```python
import torch

def _softmax(x, axis=-1):
    return torch.softmax(x, dim=axis)
def _gelu(x):
    return torch.nn.functional.gelu(x, approximate="tanh")
def _silu(x):
    return torch.nn.functional.silu(x)
def _sigmoid(x):
    return torch.sigmoid(x)
def _layernorm(x, axis=-1, eps=1e-5):
    m = x.mean(dim=axis, keepdim=True)
    v = x.var(dim=axis, keepdim=True, unbiased=False)
    return (x - m) / torch.sqrt(v + eps)
def _scatter_add(tgt, idx, src, axis=0):
    return tgt.clone().index_add_(axis, idx, src)
def _segment_sum(src, seg, n):
    out = torch.zeros((n,) + src.shape[1:], dtype=src.dtype)
    return out.index_add_(0, seg, src)
def _pad(x, pw):
    flat = tuple(v for pair in reversed(pw) for v in pair)
    return torch.nn.functional.pad(x, flat)

kernel_name = 'sequential_preLN__sliding_local_dilated__dense_activation_squared_relu__prompt'

def setup_inputs():

    _w = (lambda a: (lambda t: t.to(torch.bfloat16) if t.is_floating_point() else t)(torch.as_tensor(a)))
    def _A_setup():
        B, S, D = 1, 2048, 576
        return {
            "x": _w((lambda *s: torch.randn(*s, dtype=torch.bfloat16) * 0.05)(B, S, D)),
            "wqkv": _w((lambda *s: torch.randn(*s, dtype=torch.bfloat16) * 0.05)(D, 3 * D)),
            "wo": _w((lambda *s: torch.randn(*s, dtype=torch.bfloat16) * 0.05)(D, D)),
        }
    _A_in = _A_setup()

    def _B_setup():
        B, S, D, F = 1, 2048, 576, 4608
        return {
            "x": _w((lambda *s: torch.randn(*s, dtype=torch.bfloat16) * 0.05)(B, S, D)),
            "w1": _w((lambda *s: torch.randn(*s, dtype=torch.bfloat16) * 0.05)(D, F)),
            "b1": _w((lambda *s: torch.randn(*s, dtype=torch.bfloat16) * 0.2)(F)),
            "w2": _w((lambda *s: torch.randn(*s, dtype=torch.bfloat16) * 0.05)(F, D)),
            "b2": _w((lambda *s: torch.randn(*s, dtype=torch.bfloat16) * 1.6)(D)),
        }
    _B_in = _B_setup()

    return {
        "A_x": _A_in["x"],
        "A_wqkv": _A_in["wqkv"],
        "A_wo": _A_in["wo"],
        "B_x": _B_in["x"],
        "B_w1": _B_in["w1"],
        "B_b1": _B_in["b1"],
        "B_w2": _B_in["w2"],
        "B_b2": _B_in["b2"],
    }

def reference(A_x, A_wqkv, A_wo, B_x, B_w1, B_b1, B_w2, B_b2):
    def _A_ref(x, wqkv, wo):
        B, S, D = x.shape
        H = 32; Dh = D // H
        W, dil = 8, 2
        qkv = (lambda x, *d: x.permute(*d))((x @ wqkv).reshape(B, S, 3, H, Dh), 2, 0, 3, 1, 4)
        q, k, v = qkv[0], qkv[1], qkv[2]
        scale = Dh ** -0.5
        pos = torch.arange(S)
        off = torch.arange(W) * dil
        idx = pos[:, None] - off[None, :]
        mask = idx >= 0
        idx_c = torch.where(mask, idx, 0).reshape(-1)
        kg = k[:, :, idx_c, :].reshape(B, H, S, W, Dh)
        vg = v[:, :, idx_c, :].reshape(B, H, S, W, Dh)
        logits = torch.einsum("bhsd,bhswd->bhsw", q, kg) * scale
        logits = torch.where(mask[None, None, :, :], logits, -1e9)
        attn = _softmax(logits, axis=-1)
        o = torch.einsum("bhsw,bhswd->bhsd", attn, vg)
        return (lambda x, *d: x.permute(*d))(o, 0, 2, 1, 3).reshape(B, S, D) @ wo

    def _B_ref(x, w1, b1, w2, b2):
        h = torch.einsum("bsd,df->bsf", x, w1) + b1
        zero = torch.zeros_like(h)
        r = torch.where(h > zero, h, zero)
        h = r * r
        out = torch.einsum("bsf,fd->bsd", h, w2) + b2
        return out

    x = A_x
    h = x + _A_ref(_layernorm(x, axis=-1), A_wqkv, A_wo)
    h2 = h + _B_ref(_layernorm(h, axis=-1), B_w1, B_b1, B_w2, B_b2)
    return h2
```

```python
import re

class R:
    def __init__(self, f, i, n=1):
        self.f, self.i, self.n = f, i, n
    def __getitem__(self, x):
        if isinstance(x, slice):
            a = x.start or 0
            b = self.n if x.stop is None else x.stop
            assert 0 <= a < b <= self.n, (a, b, self.n)
            return R(self.f, self.i + a, b - a)
        assert 0 <= x < self.n, (x, self.n)
        return R(self.f, self.i + x, 1)
    def __str__(self):
        return '%s%d' % (self.f, self.i) if self.n == 1 else '%s[%d:%d]' % (self.f, self.i, self.i + self.n - 1)
    __repr__ = __str__
    def __len__(self):
        return self.n

class Pool:
    def __init__(self, f, lo, hi):
        self.f, self.lo, self.hi = f, lo, hi
        self.used = [None] * hi
        self.peak = 0
    def alloc(self, name, n=1, align=None):
        if align is None:
            align = 1 if n == 1 else (2 if self.f != 's' else (2 if n == 2 else 4))
        i = self.lo
        while i + n <= self.hi:
            if i % align == 0 and all(self.used[j] is None for j in range(i, i + n)):
                for j in range(i, i + n):
                    self.used[j] = name
                self.peak = max(self.peak, i + n)
                return R(self.f, i, n)
            i += 1
        raise RuntimeError('out of %s registers for %s (%d): %s' % (self.f, name, n, self.summary()))
    def at(self, name, i, n=1):
        for j in range(i, i + n):
            assert self.used[j] is None, (name, j, self.used[j])
            self.used[j] = name
        self.peak = max(self.peak, i + n)
        return R(self.f, i, n)
    def free(self, *rs):
        for r in rs:
            if isinstance(r, (list, tuple)):
                self.free(*r)
                continue
            assert r.f == self.f
            for j in range(r.i, r.i + r.n):
                assert self.used[j] is not None
                self.used[j] = None
    def summary(self):
        d = {}
        for u in self.used:
            if u:
                d[u] = d.get(u, 0) + 1
        return d

_reg = re.compile(r'(?<![\w.])([vas])(?:(\d+)|\[(\d+):(\d+)\])(?![\w])')

def regs_of(op):
    out = set()
    for m in _reg.finditer(op):
        f = m.group(1)
        if m.group(2) is not None:
            out.add((f, int(m.group(2))))
        else:
            for j in range(int(m.group(3)), int(m.group(4)) + 1):
                out.add((f, j))
    if re.search(r'\bvcc\b', op):
        out.add(('s', 'vcc'))
    if re.search(r'\bm0\b', op):
        out.add(('s', 'm0'))
    if re.search(r'\bexec\b', op):
        out.add(('s', 'exec'))
    return out

TRANS = ('v_exp_f32', 'v_log_f32', 'v_rcp_f32', 'v_rsq_f32', 'v_sqrt_f32', 'v_sin_f32', 'v_cos_f32')

class Ins:
    def __init__(self, text):
        self.text = text
        t = text.split(';')[0].strip()
        self.label = t.endswith(':')
        p = t.split(None, 1)
        self.op = p[0] if p else ''
        rest = p[1] if len(p) > 1 else ''
        ops = [o.strip() for o in re.split(r',(?![^\[]*\])', rest)] if rest else []
        self.ops = ops
        op = self.op
        self.cls = 'other'
        self.w, self.r = set(), set()
        self.A = self.B = self.C = set()
        self.states = 1
        if self.label or not op:
            self.cls = 'label'
            self.states = 0
        elif op.startswith('v_mfma'):
            self.cls = 'mfma'
            self.passes = 8 if ('32x32x16' in op or '4b' in op or 'x4bf16' in op) else 4
            self.w = regs_of(ops[0]); self.A = regs_of(ops[1]); self.B = regs_of(ops[2]); self.C = regs_of(ops[3].split()[0])
            self.r = self.A | self.B | self.C
        elif op.startswith('v_'):
            self.cls = 'valu'
            self.w = regs_of(ops[0])
            for o in ops[1:]:
                self.r |= regs_of(o)
            if op.startswith(('v_fmac', 'v_dot2c', 'v_writelane')) or 'dpp' in op:
                self.r |= self.w
            if op.startswith('v_permlane'):
                self.w |= regs_of(ops[1]); self.r |= self.w
            if op.startswith(('v_add_co', 'v_sub_co', 'v_addc_co', 'v_subb_co')):
                self.w |= regs_of(ops[1])
            self.trans = op.startswith(TRANS)
            self.dpp = 'dpp' in op
            self.perm = op.startswith('v_permlane')
            self.rdlane = op.startswith(('v_readlane', 'v_readfirstlane'))
        elif op.startswith('ds_'):
            self.cls = 'ds'
            if op.startswith(('ds_read', 'ds_bpermute', 'ds_permute', 'ds_swizzle')):
                self.w = regs_of(ops[0])
                for o in ops[1:]:
                    self.r |= regs_of(o)
            else:
                for o in ops:
                    self.r |= regs_of(o)
        elif op.startswith(('buffer_', 'global_')):
            self.cls = 'vmem'
            self.lds = bool(re.search(r'\blds\b', rest))
            if op.startswith(('buffer_load', 'global_load')) and not self.lds:
                self.w = regs_of(ops[0])
                for o in ops[1:]:
                    self.r |= regs_of(o)
            else:
                for o in ops:
                    self.r |= regs_of(o)
                if self.lds:
                    self.r.add(('s', 'm0'))
            self.wide_store = 'store' in op and ('x3' in op or 'x4' in op)
            self.sdata = regs_of(ops[0]) if self.wide_store else set()
        elif op.startswith('s_'):
            self.cls = 'salu'
            if op == 's_nop':
                self.states = int(ops[0], 0) + 1
            elif op.startswith(('s_cmp', 's_cbranch', 's_branch', 's_waitcnt', 's_barrier', 's_endpgm', 's_sleep', 's_setprio', 's_bitcmp')):
                for o in ops:
                    self.r |= regs_of(o)
            else:
                self.w = regs_of(ops[0])
                for o in ops[1:]:
                    self.r |= regs_of(o)
                if 'saveexec' in op:
                    self.w.add(('s', 'exec'))

def need(p, c):
    n = 0
    if p.cls == 'valu':
        vw = {x for x in p.w if x[0] != 's'}
        sw = {x for x in p.w if x[0] == 's'}
        if c.cls == 'mfma' and vw & c.r:
            n = max(n, 2)
        if c.cls == 'valu':
            if (c.dpp or c.perm) and vw & c.r:
                n = max(n, 2)
            if c.rdlane and vw & c.r:
                n = max(n, 1)
            if p.trans and not c.trans and vw & c.r:
                n = max(n, 1)
            if sw & c.r:
                n = max(n, 4 if c.op.startswith(('v_readlane', 'v_writelane')) else 2)
        if c.cls == 'vmem' and sw & c.r:
            n = max(n, 5)
        if c.cls == 'salu' and sw & c.r:
            n = max(n, 1)
    elif p.cls == 'mfma':
        long = 8 if p.passes == 4 else 12
        if c.cls == 'mfma':
            if p.w & (c.A | c.B):
                n = max(n, long)
            if p.w & c.C and not (p.w == c.C and p.passes == c.passes):
                n = max(n, long - 2)
            if p.w & c.w and not (p.w == c.C):
                n = max(n, long - 2)
        elif c.cls == 'valu':
            if p.w & (c.r | c.w):
                n = max(n, long)
            if p.C & c.w:
                n = max(n, 3 if p.passes == 4 else 7)
        elif c.cls in ('ds', 'vmem'):
            if p.w & (c.r | c.w):
                n = max(n, long)
    elif p.cls == 'salu':
        if ('s', 'm0') in p.w and c.cls == 'vmem' and c.lds:
            n = max(n, 1)
    elif p.cls == 'vmem':
        if p.wide_store and p.sdata & c.w:
            n = max(n, 2 if c.cls in ('valu', 'mfma') else 1)
    return n

def keep_tail(q, n):
    if n == 0:
        return []
    k = len(q)
    c = 0
    while k > 0 and c < n:
        k -= 1
        if not q[k][1]:
            c += 1
    return q[k:]

class Emit:
    def __init__(self):
        self.ins = []
        self.vm = []
        self.lg = []
        self.nl = 0
        self.maybe = False
        self.nops = 0
        self.branches = {}
    def __call__(self, text, tag=None):
        for ln in text.split('\n'):
            ln = ln.strip()
            if not ln:
                continue
            i = Ins(ln)
            self._pad(i)
            self.ins.append(i)
            if i.cls == 'vmem':
                self.vm.append((tag, self.maybe))
            elif i.cls == 'ds':
                self.lg.append((tag, self.maybe))
            elif i.op.startswith(('s_load', 's_memtime', 's_memrealtime')):
                self.lg.append(('smem', True))
            elif i.op == 's_waitcnt':
                m = re.search(r'vmcnt\((\d+)\)', ln)
                if m:
                    n = int(m.group(1))
                    if not self.maybe:
                        self.vm = keep_tail(self.vm, n)
                m = re.search(r'lgkmcnt\((\d+)\)', ln)
                if m:
                    n = int(m.group(1))
                    if not self.maybe:
                        assert n == 0 or not any(t == 'smem' for t, _ in self.lg)
                        self.lg = keep_tail(self.lg, n)
    def _walk(self, c, k, d):
        short = 0
        while k > 0 and d < 20:
            k -= 1
            p = self.ins[k]
            if p.cls == 'label':
                if p.label:
                    name = p.text[:-1]
                    for j in self.branches.get(name, []):
                        if j < k:
                            short = max(short, self._walk(c, j + 1, d))
                continue
            if p.op == 's_branch' and d > 0 and k + 1 != self._start:
                pass
            short = max(short, need(p, c) - d)
            d += p.states
        return short
    def _pad(self, c):
        if c.cls == 'label':
            return
        self._start = len(self.ins)
        short = self._walk(c, len(self.ins), 0)
        if short > 0:
            self.nops += 1
            self.ins.append(Ins('s_nop %d' % (short - 1)))
        if c.op.startswith(('s_cbranch', 's_branch')):
            self.branches.setdefault(c.ops[0], []).append(len(self.ins))
    def label(self, name):
        self.ins.append(Ins(name + ':'))
    def newlabel(self, stem='L'):
        self.nl += 1
        return '%s_%d' % (stem, self.nl)
    def c(self, s):
        i = Ins('')
        i.text = '; ' + s
        self.ins.append(i)
    def _count(self, q, tag):
        idx = [k for k, (t, _) in enumerate(q) if t == tag]
        if not idx:
            return None
        return sum(1 for (t, mb) in q[idx[-1] + 1:] if not mb), idx[-1]
    def wait_vm(self, tag):
        r = self._count(self.vm, tag)
        if r is None:
            return
        n, idx = r
        n = min(n, 63)
        saved = self.vm[idx + 1:]
        i = Ins('s_waitcnt vmcnt(%d)' % n)
        self.ins.append(i)
        if not self.maybe:
            self.vm = saved
    def wait_lg(self, tag):
        r = self._count(self.lg, tag)
        if r is None:
            return
        n, idx = r
        if any(t == 'smem' for t, _ in self.lg):
            n, idx = 0, len(self.lg) - 1
        n = min(n, 15)
        saved = self.lg[idx + 1:]
        self.ins.append(Ins('s_waitcnt lgkmcnt(%d)' % n))
        if not self.maybe:
            self.lg = saved
    def text(self):
        out = []
        for i in self.ins:
            out.append(i.text if i.label else '    ' + i.text)
        return '\n'.join(out) + '\n'
```

```python
import sys, math, struct
sys.path.insert(0, 'work')
from asmlib import *

KN = 'sequential_preLN__sliding_local_dilated__dense_activation_squared_relu__prompt_kernel'
WS_FLAG, WS_STAMP, WS_O, WS_H, WS_ST, WS_CS, WS_P = 0, 0x10000, 0x100000, 0x400000, 0x700000, 0x780000, 0x800000
WS_END = WS_P + 16 * 16 * 9 * 16 * 1024
LDS_BYTES = 163840
SPIN = 400000

def f2u(x):
    return struct.unpack('<I', struct.pack('<f', x))[0]

class Cfg:
    GX = 8
    stop = None
    stamps = False
    def __init__(self, **kw):
        self.__dict__.update(kw)

class Gen:
    def __init__(self, cfg):
        self.cfg = cfg
        self.e = Emit()
        self.v = Pool('v', 1, 256)
        self.a = Pool('a', 0, 256)
        self.s = Pool('s', 3, 102)
        self.nstamp = 0

    def stamp(self, name):
        if not self.cfg.stamps:
            return
        e = self.e
        i = self.nstamp
        self.nstamp += 1
        assert i < 16
        self.stamp_names.append(name)
        e('s_memrealtime %s' % self.sT)
        e('s_waitcnt lgkmcnt(0)')
        e('v_writelane_b32 %s, %s, %d' % (self.vStamp, self.sT[0], i))

    def srd(self, name, ptr, nbytes, shift=0):
        e = self.e
        r = self.s.alloc(name, 4)
        if shift:
            e('s_sub_u32 %s, %s, %d' % (r[0], ptr[0], shift))
            e('s_subb_u32 %s, %s, 0' % (r[1], ptr[1]))
        else:
            e('s_mov_b32 %s, %s' % (r[0], ptr[0]))
            e('s_mov_b32 %s, %s' % (r[1], ptr[1]))
        e('s_mov_b32 %s, %d' % (r[2], nbytes + shift))
        e('s_mov_b32 %s, 0x20000' % r[3])
        return r

    def mfma(self, d, a, b, c):
        self.e('v_mfma_f32_16x16x32_bf16 %s, %s, %s, %s' % (d, a, b, c))

    def mod9(self, dst, src, tmp):
        e = self.e
        e('s_mul_i32 %s, %s, 7282' % (tmp, src))
        e('s_lshr_b32 %s, %s, 16' % (tmp, tmp))
        e('s_mul_i32 %s, %s, 9' % (tmp, tmp))
        e('s_sub_u32 %s, %s, %s' % (dst, src, tmp))

    def pitch144_offsets(self, vD, pitch, sbase, t0, t1, t2):
        e = self.e
        for i in range(9):
            e('v_add_u32 %s, %d, %s' % (t0, 64 * i, self.vL))
            e('v_mul_u32_u24 %s, 7282, %s' % (t1, t0))
            e('v_lshrrev_b32 %s, 16, %s' % (t1, t1))
            e('v_mul_u32_u24 %s, 9, %s' % (t2, t1))
            e('v_sub_u32 %s, %s, %s' % (t0, t0, t2))
            e('v_lshl_add_u32 %s, %s, 4, %s' % (vD[i], t0, sbase))
            e('v_and_b32 %s, 56, %s' % (t0, t1))
            e('v_bfe_u32 %s, %s, 1, 2' % (t2, t1))
            e('v_add_u32 %s, %s, %s' % (t0, t0, t2))
            e('v_and_b32 %s, 1, %s' % (t2, t1))
            e('v_lshl_add_u32 %s, %s, 2, %s' % (t0, t2, t0))
            e('v_mul_u32_u24 %s, %d, %s' % (t0, pitch, t0))
            e('v_add_u32 %s, %s, %s' % (vD[i], vD[i], t0))

    def setup(self):
        e, v, s, cfg = self.e, self.v, self.s, self.cfg
        e('s_cmp_ge_u32 s2, 256')
        e('s_cbranch_scc1 L_end')
        self.kp = s.alloc('kp', 16)
        self.kq = s.alloc('kq', 4)
        self.kw = s.alloc('kw', 2)
        e('s_load_dwordx16 %s, s[0:1], 0' % self.kp)
        e('s_load_dwordx4 %s, s[0:1], 64' % self.kq)
        e('s_load_dwordx2 %s, s[0:1], 80' % self.kw)
        self.stamp_names = []
        if cfg.stamps:
            self.sT = s.alloc('sT', 2)
            self.sT0 = s.alloc('sT0', 2)
            self.vStamp = v.alloc('stamp')
            e('s_memrealtime %s' % self.sT0)
        self.sW = s.alloc('sW'); self.sG = s.alloc('sG'); self.sJ = s.alloc('sJ')
        self.sRH = s.alloc('sRH'); self.sQD = s.alloc('sQD'); self.sP = s.alloc('sP'); self.sU0 = s.alloc('sU0')
        self.st = [s.alloc('st%d' % i) for i in range(4)]
        self.vL = v.alloc('vL'); self.vN = v.alloc('vN'); self.vQ = v.alloc('vQ')
        self.vt = [v.alloc('vt%d' % i) for i in range(4)]
        st, vt = self.st, self.vt
        e('v_lshrrev_b32 %s, 6, v0' % vt[0])
        e('v_and_b32 %s, 63, v0' % self.vL)
        e('v_readfirstlane_b32 %s, %s' % (self.sW, vt[0]))
        e('v_and_b32 %s, 15, v0' % self.vN)
        e('v_bfe_u32 %s, v0, 4, 2' % self.vQ)
        GX = cfg.GX; MX = 32 // GX; nj = 16 // MX
        e('s_and_b32 %s, s2, 7' % st[0])
        e('s_lshr_b32 %s, s2, 3' % st[1])
        e('s_and_b32 %s, %s, %d' % (self.sJ, st[0], nj - 1))
        e('s_lshr_b32 %s, %s, %d' % (self.sG, st[0], nj.bit_length() - 1))
        e('s_mul_i32 %s, %s, %d' % (self.sG, self.sG, GX))
        e('s_and_b32 %s, %s, %d' % (st[2], st[1], GX - 1))
        e('s_add_u32 %s, %s, %s' % (self.sG, self.sG, st[2]))
        e('s_mul_i32 %s, %s, %d' % (self.sJ, self.sJ, MX))
        e('s_lshr_b32 %s, %s, %d' % (st[2], st[1], GX.bit_length() - 1))
        e('s_add_u32 %s, %s, %s' % (self.sJ, self.sJ, st[2]))
        e('s_and_b32 %s, %s, 1' % (self.sRH, self.sJ))
        e('s_lshr_b32 %s, %s, 1' % (self.sQD, self.sJ))
        e('s_and_b32 %s, %s, 1' % (self.sP, self.sG))
        e('s_lshr_b32 %s, %s, 1' % (st[0], self.sG))
        e('s_lshl_b32 %s, %s, 1' % (st[0], st[0]))
        e('s_add_u32 %s, %s, %s' % (st[0], st[0], self.sRH))
        e('s_lshl_b32 %s, %s, 6' % (self.sU0, st[0]))

    def srds(self):
        kp, kq, kw = self.kp, self.kq, self.kw
        self.rX = self.srd('rX', kp[0:2], 2048 * 1152)
        self.rWS = self.srd('rWS', kw, WS_END)
        self.rDBG = self.srd('rDBG', kq[2:4], 256)

    def p1(self):
        e, v, s, cfg = self.e, self.v, self.s, self.cfg
        st, vt, vL, vN, vQ = self.st, self.vt, self.vL, self.vN, self.vQ
        SLOT = 37888
        vD = v.alloc('vD', 9, 1)
        rD = s.alloc('rD', 4)
        sStr = s.alloc('sStr'); sCh = s.alloc('sCh'); sOff = s.alloc('sOff'); sM0 = s.alloc('sM0')
        e('s_lshl_b32 %s, %s, 1' % (st[0], self.sG))
        e('s_add_u32 %s, %s, %s' % (st[0], st[0], self.sRH))
        e('s_lshl_b32 %s, %s, 2' % (st[1], self.sQD))
        e('s_add_u32 %s, %s, %s' % (st[0], st[0], st[1]))
        self.mod9(sCh, st[0], st[1])
        e('s_mul_i32 %s, %s, 9216' % (sM0, self.sW))
        e('s_add_u32 %s, %s, 1024' % (sM0, sM0))
        lw, lj = e.newlabel('L_p1w'), e.newlabel('L_p1j')
        e('s_cmp_lg_u32 %s, 0' % self.sW)
        e('s_cbranch_scc1 %s' % lw)
        e('v_lshrrev_b32 %s, 3, %s' % (vt[0], vL))
        e('v_and_b32 %s, 7, %s' % (vt[1], vL))
        e('s_lshl_b32 %s, %s, 1' % (st[0], self.sU0))
        e('s_add_u32 %s, %s, %s' % (st[0], st[0], self.sP))
        e('s_sub_u32 %s, %s, 16' % (st[0], st[0]))
        e('v_lshl_add_u32 %s, %s, 1, %s' % (vt[0], vt[0], st[0]))
        e('v_cmp_gt_i32 vcc, 0, %s' % vt[0])
        e('v_mul_i32_i24 %s, 1152, %s' % (vt[0], vt[0]))
        for par in range(2):
            e('v_add_u32 %s, %d, %s' % (vt[2], 4 * (1 - par), vQ))
            e('v_xor_b32 %s, %s, %s' % (vt[2], vt[2], vt[1]))
            e('v_lshl_add_u32 %s, %s, 4, %s' % (vt[3], vt[2], vt[0]))
            for i in range(par, 9, 2):
                e('v_add_u32 %s, %d, %s' % (vD[i], i * 16 * 1152, vt[3]))
        e('v_mov_b32 %s, 0xf0000000' % vt[2])
        e('v_cndmask_b32 %s, %s, %s, vcc' % (vD[0], vD[0], vt[2]))
        e('s_movk_i32 %s, 128' % sStr)
        e('s_waitcnt lgkmcnt(0)')
        e('s_mov_b32 %s, %s\ns_mov_b32 %s, %s' % (rD[0], self.kp[0], rD[1], self.kp[1]))
        e('s_mov_b32 %s, %d' % (rD[2], 2048 * 1152))
        e('s_branch %s' % lj)
        e.label(lw)
        e('s_sub_u32 %s, %s, 1' % (st[0], self.sW))
        e('s_mul_i32 %s, %s, 1152' % (st[0], st[0]))
        e('s_mul_i32 %s, %s, 144' % (st[1], self.sQD))
        e('s_add_u32 %s, %s, %s' % (st[0], st[0], st[1]))
        self.pitch144_offsets(vD, 3456, st[0], vt[0], vt[1], vt[2])
        e('s_mov_b32 %s, %d' % (sStr, 64 * 3456))
        e('s_waitcnt lgkmcnt(0)')
        e('s_mov_b32 %s, %s\ns_mov_b32 %s, %s' % (rD[0], self.kp[2], rD[1], self.kp[3]))
        e('s_mov_b32 %s, %d' % (rD[2], 576 * 3456))
        e.label(lj)
        e('s_mov_b32 %s, 0x20000' % rD[3])
        self.srds()
        self.flag_clear()

        def dma(t):
            out = ['s_mul_i32 %s, %s, %s' % (sOff, sCh, sStr),
                   's_add_u32 %s, %s, 1\ns_cmp_eq_u32 %s, 9\ns_cselect_b32 %s, 0, %s' % (sCh, sCh, sCh, sCh, sCh)]
            for i in range(9):
                out.append('s_add_u32 m0, %s, %d\nbuffer_load_dwordx4 %s, %s, %s offen lds' % (sM0, (t % 4) * SLOT + 1024 * i, vD[i], rD, sOff))
            return out
        for t in range(4):
            for x in dma(t):
                e(x, tag=('p1', t))
        self.stamp('p1 issued')

        ones = v.alloc('ones', 4)
        for i in range(4):
            e('v_mov_b32 %s, 0x3f803f80' % ones[i])
        e('s_mul_i32 %s, %s, %d' % (st[0], self.sW, SLOT))
        e('v_lshl_add_u32 %s, %s, 4, %s' % (vt[0], vL, st[0]))
        e('ds_write_b128 %s, %s' % (vt[0], ones))
        vXa = v.alloc('vXa', 8, 1); vXm = v.alloc('vXm', 8, 1); vWa = v.alloc('vWa', 4, 1); vRa = v.alloc('vRa', 8, 1)
        sPair = s.alloc('sPair'); sMain = s.alloc('sMain'); sOdd = s.alloc('sOdd', 2)
        e('s_lshr_b32 %s, %s, 1' % (sPair, self.sW))
        e('s_mul_i32 %s, %s, 72' % (sPair, sPair))
        e('s_and_b32 %s, %s, 1' % (st[0], self.sW))
        e('s_mul_i32 %s, %s, 40' % (sMain, st[0]))
        e('s_add_u32 %s, %s, %s' % (sMain, sMain, sPair))
        e('s_cmp_eq_u32 %s, 1' % st[0])
        e('s_cselect_b64 %s, -1, 0' % sOdd)
        e('s_add_u32 %s, %s, 1\ns_lshl_b32 %s, %s, 11' % (st[1], self.sW, st[1], st[1]))
        e('v_lshrrev_b32 %s, 1, %s' % (vt[0], vN))
        for ee in range(2):
            e('v_add_u32 %s, %d, %s' % (vt[1], 4 * ee, vQ))
            e('v_xor_b32 %s, %s, %s' % (vt[1], vt[1], vt[0]))
            e('v_lshlrev_b32 %s, 4, %s' % (vt[1], vt[1]))
            e('v_lshl_add_u32 %s, %s, 7, %s' % (vXa[ee], vN, vt[1]))
            e('v_add_u32 %s, %s, %s' % (vXm[ee], st[1], vXa[ee]))
        e('v_lshrrev_b32 %s, 2, %s' % (vt[0], vL))
        e('v_mul_u32_u24 %s, 288, %s' % (vt[0], vt[0]))
        e('v_and_b32 %s, 3, %s' % (vt[1], vL))
        self.vTr = v.alloc('vTr')
        e('v_lshl_add_u32 %s, %s, 3, %s' % (self.vTr, vt[1], vt[0]))
        e('s_add_u32 %s, %s, 10240' % (st[2], sMain))
        e('v_add_u32 %s, %s, %s' % (vWa[0], st[2], self.vTr))
        e('v_mul_u32_u24 %s, 9216, %s' % (vt[2], vt[1]))
        e('s_add_u32 %s, %s, %d' % (st[2], sPair, 10240 + 32))
        e('v_add3_u32 %s, %s, %s, %s' % (vt[2], vt[2], vt[0], st[2]))
        e('v_cmp_eq_u32 vcc, 3, %s' % vt[1])
        e('v_add_u32 %s, 4608, %s' % (vt[3], vt[2]))
        e('v_cndmask_b32 %s, %s, 0, vcc' % (vRa[0], vt[2]))
        e('v_cndmask_b32 %s, %s, 0, vcc' % (vRa[1], vt[3]))
        for sl in range(1, 4):
            for ee in range(2):
                e('v_add_u32 %s, %d, %s' % (vXa[2 * sl + ee], sl * SLOT, vXa[ee]))
                e('v_add_u32 %s, %d, %s' % (vXm[2 * sl + ee], sl * SLOT, vXm[ee]))
                e('v_add_u32 %s, %d, %s' % (vRa[2 * sl + ee], sl * SLOT, vRa[ee]))
            e('v_add_u32 %s, %d, %s' % (vWa[sl], sl * SLOT, vWa[0]))
        sM = [s.alloc('sM%d' % i, 2) for i in range(3)]
        sMD = s.alloc('sMD', 2)
        e('v_and_b32 %s, 3, %s' % (vt[0], vN))
        for i in range(3):
            e('v_cmp_eq_u32 %s, %d, %s' % (sM[i], i + 1, vt[0]))
        e('v_lshrrev_b32 %s, 2, %s' % (vt[0], vN))
        e('v_cmp_eq_u32 %s, %s, %s' % (sMD, vt[0], vQ))
        mA = v.alloc('mA', 4); mB = v.alloc('mB', 4); mA0 = v.alloc('mA0', 4)
        e('v_lshlrev_b32 %s, 2, %s' % (vt[0], vQ))
        e('v_sub_u32 %s, %s, %s' % (vt[0], vN, vt[0]))
        e('v_mov_b32 %s, 0x%x' % (vt[2], f2u(-1e30)))
        e('s_cmp_eq_u32 %s, 0' % self.sU0)
        sFirst = s.alloc('sFirst', 2)
        e('s_cselect_b64 %s, -1, 0' % sFirst)
        for i in range(4):
            e('v_add_u32 %s, %d, %s' % (vt[1], 16 - i, vt[0]))
            e('v_cmp_gt_u32 vcc, 8, %s' % vt[1])
            e('v_cndmask_b32 %s, %s, 0, vcc' % (mA[i], vt[2]))
            e('v_subrev_u32 %s, %d, %s' % (vt[1], i, vt[0]))
            e('v_cmp_gt_u32 vcc, 8, %s' % vt[1])
            e('v_cndmask_b32 %s, %s, 0, vcc' % (mB[i], vt[2]))
            e('v_cndmask_b32 %s, %s, %s, %s' % (mA0[i], mA[i], vt[2], sFirst))
        s.free(sFirst)

        acc = {m: [v.alloc('acc' + m, 4) for _ in range(5)] for m in 'QKVR'}
        dg0 = v.alloc('dg0', 4); dgm = v.alloc('dgm', 4)
        fa = [{m: v.alloc('fa', 4) for m in 'QKVR'} for _ in range(2)]
        fb = [[v.alloc('fb', 4) for _ in range(6)] for _ in range(2)]

        def reads(t, ee):
            sl = t % 4
            out = []
            def tr(m):
                if m == 'R':
                    a, off = vRa[2 * sl + ee], 0
                else:
                    a, off = vWa[sl], 'QKV'.index(m) * 9216 + ee * 4608
                for h in range(2):
                    out.append(('ds_read_b64_tr_b16 %s, %s offset:%d' % (fa[ee][m][2 * h:2 * h + 2], a, off + 144 * h), (t, ee, m)))
            tr('K')
            for rt in range(5):
                out.append(('ds_read_b128 %s, %s offset:%d' % (fb[ee][rt], vXa[2 * sl + ee], 2048 * rt), (t, ee, rt)))
            tr('V'); tr('Q'); tr('R')
            out.append(('ds_read_b128 %s, %s' % (fb[ee][5], vXm[2 * sl + ee]), (t, ee, 5)))
            return out
        e('s_waitcnt lgkmcnt(0)')
        for t in range(9):
            e.wait_vm(('p1', t))
            e('s_barrier')
            if t == 0:
                self.stamp('p1 first')
            for x, tg in reads(t, 0):
                e(x, tag=tg)
            if t == 0:
                self.count_in()
            if t == 6:
                self.cs_loads()
            fill = []
            if 1 <= t and t + 3 < 9:
                fill = [(x, ('p1', t + 3)) for x in dma(t + 3)]
            for ee in range(2):
                first = (t == 0 and ee == 0)
                nxt = reads(t, 1) if ee == 0 else []
                q = []
                while nxt or (fill and (ee == 1 or len(q) < 22)):
                    if nxt:
                        q.append(nxt.pop(0))
                    if fill and (ee == 1 or len(q) % 3 == 2):
                        q.append(fill.pop(0))
                    if not nxt and ee == 0:
                        break
                seq = [(m, rt) for m in 'KVQR' for rt in range(5)] + [('d', 0), ('d', 5)]
                for n, (m, rt) in enumerate(seq):
                    if m == 'd':
                        e.wait_lg((t, ee, rt))
                        d = dg0 if rt == 0 else dgm
                        self.mfma(d, fb[ee][rt], fb[ee][rt], 0 if first else d)
                    else:
                        e.wait_lg((t, ee, m))
                        e.wait_lg((t, ee, rt))
                        self.mfma(acc[m][rt], fa[ee][m], fb[ee][rt], 0 if first else acc[m][rt])
                    if q:
                        x, tg = q.pop(0)
                        e(x, tag=tg)
                for x, tg in q:
                    e(x, tag=tg)
        for d in fa:
            v.free(list(d.values()))
        v.free(fb, vXa, vXm, vWa, vRa)
        self.stamp('p1 gemm')

        L_ST = 4 * SLOT
        VB0, OT = 83968, 99328
        self.OT = OT
        vS = v.alloc('vS')
        e('v_lshlrev_b32 %s, 3, %s' % (vS, vN))
        e('v_add_u32 %s, %d, %s' % (vS, L_ST, vS))
        e('s_add_u32 %s, %s, 1\ns_lshl_b32 %s, %s, 7' % (st[1], self.sW, st[1], st[1]))
        e('v_add_u32 %s, %s, %s' % (vt[2], st[1], vS))
        for d, t in ((dg0, vt[0]), (dgm, vt[1])):
            e('v_cndmask_b32 %s, %s, %s, %s' % (t, d[0], d[1], sM[0]))
            e('v_cndmask_b32 %s, %s, %s, %s' % (t, t, d[2], sM[1]))
            e('v_cndmask_b32 %s, %s, %s, %s' % (t, t, d[3], sM[2]))
        e('s_mov_b64 exec, %s' % sMD)
        e('ds_write_b32 %s, %s offset:4' % (vS, vt[0]))
        e('ds_write_b32 %s, %s offset:4' % (vt[2], vt[1]))
        e('s_mov_b32 exec_lo, 0\ns_mov_b32 exec_hi, 0xffff0000')
        for rt in range(5):
            e('ds_write_b32 %s, %s offset:%d' % (vS, acc['R'][rt][0], 128 * rt))
        e('s_mov_b64 exec, -1')
        v.free(dg0, dgm)
        s.free(sM, sMD, rD, sStr, sCh, sOff, sM0)
        rr = [v.alloc('rr', 2) for _ in range(5)]
        for rt in range(5):
            for i in range(2):
                e('v_cndmask_b32 %s, %s, %s, %s' % (rr[rt][i], acc['R'][rt][i], acc['R'][rt][2 + i], sOdd))
        e('s_waitcnt lgkmcnt(0)')
        e('s_barrier')
        v.free(acc['R'])
        self.after_p1_gemm(vD)
        sv = [v.alloc('sv', 2) for _ in range(5)]
        for rt in range(5):
            e('ds_read_b64 %s, %s offset:%d' % (sv[rt], vS, 128 * rt), tag=('sv', rt))
        v.free(vS)
        vVw = v.alloc('vVw'); vRw = v.alloc('vRw'); vKr = v.alloc('vKr'); vVt = v.alloc('vVt'); vVr = v.alloc('vVr')
        e('s_mul_i32 %s, %s, 3840' % (st[0], self.sW))
        e('s_add_u32 %s, %s, %d' % (st[0], st[0], VB0))
        e('v_mad_u32_u24 %s, %s, 48, %s' % (vKr, vN, st[0]))
        e('v_lshl_add_u32 %s, %s, 3, %s' % (vVw, vQ, vKr))
        e('v_lshl_add_u32 %s, %s, 2, %s' % (vRw, vQ, vKr))
        e('v_lshrrev_b32 %s, 2, %s' % (vt[0], vL))
        e('v_mad_u32_u24 %s, %s, 48, %s' % (vVr, vt[0], st[0]))
        e('v_and_b32 %s, 3, %s' % (vt[0], vL))
        e('v_lshl_add_u32 %s, %s, 3, %s' % (vVt, vt[0], vVr))
        sC = s.alloc('sC'); sE = s.alloc('sE')
        e('s_mov_b32 %s, 0x%x' % (sC, f2u(1.0 / 576)))
        e('s_mov_b32 %s, 0x%x' % (sE, f2u(1e-5)))
        for rt in range(5):
            e.wait_lg(('sv', rt))
            e('v_mul_f32 %s, %s, -%s' % (vt[0], sC, sv[rt][0]))
            e('v_mul_f32 %s, %s, %s' % (vt[1], vt[0], vt[0]))
            e('v_fma_f32 %s, %s, %s, -%s' % (vt[1], sv[rt][1], sC, vt[1]))
            e('v_max_f32 %s, 0, %s' % (vt[1], vt[1]))
            e('v_add_f32 %s, %s, %s' % (vt[1], sE, vt[1]))
            e('v_rsq_f32 %s, %s' % (sv[rt][0], vt[1]))
            e('v_mov_b32 %s, %s' % (sv[rt][1], vt[0]))
        qop = [None] + [v.alloc('qop', 4) for _ in range(4)]
        kop = [v.alloc('kop', 4) for _ in range(5)]
        sG0 = s.alloc('sG0', 2); sG3 = s.alloc('sG3', 2)
        e('s_mov_b64 %s, 0xffff' % sG0)
        e('s_mov_b32 %s, 0\ns_mov_b32 %s, 0xffff0000' % (sG3[0], sG3[1]))
        DPP = 'row_newbcast:0 row_mask:0xf bank_mask:0xf'
        for rt in (4, 3, 2, 1, 0):
            sets = [(rr[rt], rr[0]), (acc['V'][rt], acc['V'][0]), (acc['K'][rt], acc['K'][0])]
            if rt:
                sets.append((acc['Q'][rt], acc['Q'][0]))
            for x, c0 in sets:
                for i in range(len(x)):
                    e('v_fmac_f32_dpp %s, %s, %s %s' % (x[i], c0[i], sv[rt][1], DPP))
            for x, c0 in sets:
                for i in range(0, len(x), 2):
                    e('v_pk_mul_f32 %s, %s, %s op_sel_hi:[1,0]' % (x[i:i + 2], x[i:i + 2], sv[rt]))
            e('v_cvt_pk_bf16_f32 %s, %s, %s' % (vt[0], rr[rt][0], rr[rt][1]))
            e('v_cvt_pk_bf16_f32 %s, %s, %s' % (acc['V'][rt][0], acc['V'][rt][0], acc['V'][rt][1]))
            e('v_cvt_pk_bf16_f32 %s, %s, %s' % (acc['V'][rt][1], acc['V'][rt][2], acc['V'][rt][3]))
            e('v_cndmask_b32 %s, %s, %s, %s' % (vt[1], vt[0], ones[0], sG3))
            e('ds_write_b64 %s, %s offset:%d' % (vVw, acc['V'][rt][0:2], 768 * rt))
            e('ds_write_b32 %s, %s offset:%d' % (vRw, vt[1], 768 * rt + 32))
            for h in range(2):
                e('v_cvt_pk_bf16_f32 %s, %s, %s' % (kop[rt][h], acc['K'][rt][2 * h], acc['K'][rt][2 * h + 1]))
            e('v_mov_b32 %s, 0' % kop[rt][3])
            e('ds_read_b32 %s, %s offset:%d' % (kop[rt][2], vKr, 768 * rt + 36), tag=('kr', rt))
            if rt:
                for h in range(2):
                    e('v_cvt_pk_bf16_f32 %s, %s, %s' % (qop[rt][h], acc['Q'][rt][2 * h], acc['Q'][rt][2 * h + 1]))
                e('v_cndmask_b32 %s, 0, %s, %s' % (qop[rt][2], vt[0], sG0))
                e('v_mov_b32 %s, 0' % qop[rt][3])
        v.free(acc['Q'], acc['K'], acc['V'], rr, sv, ones)
        vm_ = v.alloc('vmain', 10); vr_ = v.alloc('vrem', 10)
        for rt in range(5):
            e('ds_read_b64_tr_b16 %s, %s offset:%d' % (vm_[2 * rt:2 * rt + 2], vVt, 768 * rt), tag='vt')
            e('ds_read_b64_tr_b16 %s, %s offset:%d' % (vr_[2 * rt:2 * rt + 2], vVr, 768 * rt + 40), tag='vt')
        v.free(vVw, vRw, vKr, vVt, vVr)
        sc = [None] + [v.alloc('sc', 8) for _ in range(4)]
        e.wait_lg(('kr', 0))
        for t in (4, 3, 2, 1):
            self.mfma(sc[t][0:4], kop[t - 1], qop[t], mA0 if t == 1 else mA)
            self.mfma(sc[t][4:8], kop[t], qop[t], mB)
        v.free(qop[1:], kop)
        e('s_mov_b32 %s, 0x%x' % (sC, f2u(18 ** -0.5 * math.log2(math.e))))
        mx = [None] + [v.alloc('mx', 2) for _ in range(4)]
        T = (4, 3, 2, 1)
        for t in T:
            x = sc[t]
            e('v_max3_f32 %s, %s, %s, %s' % (mx[t][0], x[0], x[1], x[2]))
            e('v_max3_f32 %s, %s, %s, %s' % (mx[t][1], x[3], x[4], x[5]))
            e('v_max3_f32 %s, %s, %s, %s' % (mx[t][0], mx[t][0], x[6], x[7]))
        for t in T:
            e('v_max_f32 %s, %s, %s' % (mx[t][0], mx[t][0], mx[t][1]))
        for sw in ('v_permlane16_swap_b32', 'v_permlane32_swap_b32'):
            for t in T:
                e('v_mov_b32 %s, %s' % (mx[t][1], mx[t][0]))
            for t in T:
                e('%s %s, %s' % (sw, mx[t][0], mx[t][1]))
            for t in T:
                e('v_max_f32 %s, %s, %s' % (mx[t][0], mx[t][0], mx[t][1]))
        for t in T:
            e('v_mul_f32 %s, %s, %s' % (mx[t][0], sC, mx[t][0]))
        om = [None] + [v.alloc('om', 4) for _ in range(4)]
        orr = [None] + [v.alloc('orr', 4) for _ in range(4)]
        e.wait_lg('vt')
        for t in T:
            x = sc[t]
            for i in range(8):
                e('v_fma_f32 %s, %s, %s, -%s' % (x[i], x[i], sC, mx[t][0]))
            for i in range(8):
                e('v_exp_f32 %s, %s' % (x[i], x[i]))
            for i in range(4):
                e('v_cvt_pk_bf16_f32 %s, %s, %s' % (x[i], x[2 * i], x[2 * i + 1]))
            self.mfma(orr[t], vr_[2 * t - 2:2 * t + 2], x[0:4], 0)
            self.mfma(om[t], vm_[2 * t - 2:2 * t + 2], x[0:4], 0)
        v.free(vm_, vr_, mA, mB, mA0)
        vOw = v.alloc('vOw'); vOr = v.alloc('vOr')
        e('s_add_u32 %s, %s, %d' % (st[0], sMain, OT))
        e('v_mad_u32_u24 %s, %s, %s, %s' % (vt[0], vN, self.k144(), st[0]))
        e('v_lshl_add_u32 %s, %s, 3, %s' % (vOw, vQ, vt[0]))
        e('s_and_b32 %s, %s, 1\ns_lshl_b32 %s, %s, 2' % (st[0], self.sW, st[0], st[0]))
        e('s_add_u32 %s, %s, %s\ns_add_u32 %s, %s, %d' % (st[0], st[0], sPair, st[0], st[0], OT + 32))
        e('v_mad_u32_u24 %s, %s, %s, %s' % (vOr, vN, self.k144(), st[0]))
        for t in T:
            e('v_rcp_f32 %s, %s' % (mx[t][0], orr[t][2]))
        for t in T:
            e('v_pk_mul_f32 %s, %s, %s op_sel_hi:[1,0]' % (om[t][0:2], om[t][0:2], mx[t]))
            e('v_pk_mul_f32 %s, %s, %s op_sel_hi:[1,0]' % (om[t][2:4], om[t][2:4], mx[t]))
            e('v_pk_mul_f32 %s, %s, %s op_sel_hi:[1,0]' % (orr[t][0:2], orr[t][0:2], mx[t]))
            e('v_cvt_pk_bf16_f32 %s, %s, %s' % (om[t][0], om[t][0], om[t][1]))
            e('v_cvt_pk_bf16_f32 %s, %s, %s' % (om[t][1], om[t][2], om[t][3]))
            e('v_cvt_pk_bf16_f32 %s, %s, %s' % (orr[t][0], orr[t][0], orr[t][1]))
            e('ds_write_b64 %s, %s offset:%d' % (vOw, om[t][0:2], 2304 * (t - 1)))
            e('ds_write_b32 %s, %s offset:%d' % (vOr, orr[t][0], 2304 * (t - 1)))
        v.free(sc[1:], mx[1:], om[1:], orr[1:], vOw, vOr)
        s.free(sPair, sMain, sOdd, sG3, sC, sE)
        self.sG0 = sG0
        ob = v.alloc('ob', 12)
        e('s_mul_i32 %s, %s, 2304' % (st[0], self.sW))
        e('s_add_u32 %s, %s, %d' % (st[0], st[0], OT))
        e('v_mad_u32_u24 %s, %s, %s, %s' % (vt[0], vN, self.k144(), st[0]))
        e('v_lshl_add_u32 %s, %s, 4, %s' % (vt[0], vQ, vt[0]))
        self.sRT = s.alloc('sRT')
        e('s_lshl_b32 %s, %s, 1\ns_add_u32 %s, %s, %s' % (st[0], self.sG, st[0], st[0], self.sRH))
        e('s_lshl_b32 %s, %s, 2\ns_add_u32 %s, %s, %s' % (st[0], st[0], st[0], st[0], self.sW))
        e('s_mul_i32 %s, %s, 18432' % (self.sRT, st[0]))
        self.vL16 = v.alloc('vL16')
        e('v_lshlrev_b32 %s, 4, %s' % (self.vL16, vL))
        e('s_mul_i32 %s, %s, 2304' % (st[1], self.sQD))
        e('s_add_u32 %s, %s, %s' % (st[1], st[1], self.sRT))
        e('s_add_u32 %s, %s, %d' % (st[1], st[1], WS_O))
        e('s_waitcnt lgkmcnt(0)')
        e('s_barrier')
        for i in range(3):
            e('ds_read_b128 %s, %s offset:%d' % (ob[4 * i:4 * i + 4], vt[0], 64 * i), tag=('ob', i))
        for i in range(3):
            e.wait_lg(('ob', i))
            if i == 2:
                e('s_mov_b64 exec, 0xffff')
            e('buffer_store_dwordx4 %s, %s, %s, %s offen offset:%d sc1' % (ob[4 * i:4 * i + 4], self.vL16, self.rWS, st[1], 1024 * i), tag='ost')
        e('s_mov_b64 exec, -1')
        self.stamp('p1 attn')
        self.ob = ob

    def k144(self):
        if not hasattr(self, 'v144'):
            self.v144 = self.v.alloc('v144')
            self.e('v_mov_b32 %s, 144' % self.v144)
        return self.v144

    def flag_clear(self):
        e, v, s = self.e, self.v, self.s
        st, vt = self.st, self.vt
        self.sN = s.alloc('sN'); self.sFlag = s.alloc('sFlag')
        e('s_lshl_b32 %s, %s, 4\ns_add_u32 %s, %s, %s' % (st[0], self.sG, self.sN, st[0], self.sJ))
        e('s_lshl_b32 %s, %s, 7' % (self.sFlag, self.sN))
        self.vZ = v.alloc('vZ')
        e('v_mov_b32 %s, 0' % self.vZ)
        e('v_lshlrev_b32 %s, 2, %s' % (vt[0], self.vL))
        e('s_mov_b64 exec, 0xff')
        e('buffer_store_dword %s, %s, %s, %s offen sc1' % (self.vZ, vt[0], self.rWS, self.sFlag), tag='clr')
        e('s_mov_b64 exec, -1')

    def wave0(self, body):
        e = self.e
        l = e.newlabel('L_w0')
        e('s_cmp_lg_u32 %s, 0\ns_cbranch_scc1 %s' % (self.sW, l))
        e.maybe = True
        body()
        e.maybe = False
        e.label(l)

    def count_in(self):
        e, vt = self.e, self.vt
        def body():
            e('v_mov_b32 %s, 1' % vt[0])
            e('s_mov_b64 exec, 1')
            e('buffer_atomic_add %s, %s, %s, 0 offen sc1' % (vt[0], self.vZ, self.rDBG))
            e('s_mov_b64 exec, -1')
        self.wave0(body)

    def set_flag(self, val):
        e, vt = self.e, self.vt
        e('v_mov_b32 %s, %d' % (vt[0], val))
        e('s_mov_b64 exec, 1')
        e('buffer_store_dword %s, %s, %s, %s offen sc1' % (vt[0], self.vZ, self.rWS, self.sFlag))
        e('s_mov_b64 exec, -1')

    def poll(self, vaddr, srd, nlanes, val, width=1):
        e, vt, st = self.e, self.vt, self.st
        l, lo = e.newlabel('L_poll'), e.newlabel('L_pollx')
        e('s_mov_b64 exec, 0x%x' % ((1 << nlanes) - 1))
        e('s_mov_b32 %s, 0' % st[3])
        e.label(l)
        e('s_add_u32 %s, %s, 1\ns_cmp_gt_u32 %s, %d\ns_cbranch_scc1 %s' % (st[3], st[3], st[3], SPIN, lo))
        if width == 1:
            e('buffer_load_dword %s, %s, %s, 0 offen sc1' % (self.vp[0], vaddr, srd))
            e('s_waitcnt vmcnt(0)')
        else:
            e('buffer_load_dwordx4 %s, %s, %s, 0 offen sc1' % (self.vp, vaddr, srd))
            e('s_waitcnt vmcnt(0)')
            e('v_min_u32 %s, %s, %s' % (self.vp[0], self.vp[0], self.vp[1]))
            e('v_min3_u32 %s, %s, %s, %s' % (self.vp[0], self.vp[0], self.vp[2], self.vp[3]))
        e('v_cmp_gt_u32 vcc, %d, %s' % (val, self.vp[0]))
        e('s_cbranch_vccnz %s' % l)
        e.label(lo)
        e('s_mov_b64 exec, -1')

    def cs_loads(self):
        e, v, s = self.e, self.v, self.s
        st, vt = self.st, self.vt
        self.rW1 = self.srd('rW1', self.kp[8:10], 576 * 9216, shift=4096)
        self.csd = self.a.alloc('csd', 24)
        self.sCs = s.alloc('sCs')
        e('s_mul_i32 %s, %s, 911\ns_lshr_b32 %s, %s, 16' % (st[0], self.sN, st[0], st[0]))
        e('s_mul_i32 %s, %s, 72\ns_sub_u32 %s, %s, %s' % (st[1], st[0], st[1], self.sN, st[1]))
        e('s_lshl_b32 %s, %s, 2\ns_add_u32 %s, %s, %s' % (st[0], st[0], st[0], st[0], self.sW))
        e('s_mul_i32 %s, %s, %d' % (self.sCs, st[0], 4608 * 4))
        e('s_lshl_b32 %s, %s, 8\ns_add_u32 %s, %s, %s' % (st[2], st[1], self.sCs, self.sCs, st[2]))
        e('s_add_u32 %s, %s, %d' % (self.sCs, self.sCs, WS_CS))
        e('s_mul_i32 %s, %s, %d' % (st[0], st[0], 48 * 9216))
        e('s_lshl_b32 %s, %s, 7\ns_add_u32 %s, %s, %s' % (st[1], st[1], st[0], st[0], st[1]))
        e('s_add_u32 %s, %s, 4096' % (st[0], st[0]))
        e('v_lshrrev_b32 %s, 3, %s' % (vt[0], self.vL))
        e('v_mul_u32_u24 %s, 9216, %s' % (vt[0], vt[0]))
        e('v_and_b32 %s, 7, %s' % (vt[1], self.vL))
        e('v_lshl_add_u32 %s, %s, 4, %s' % (vt[0], vt[1], vt[0]))
        e('v_add_u32 %s, %s, %s' % (vt[0], st[0], vt[0]))
        for i in range(6):
            e('buffer_load_dwordx4 %s, %s, %s, 0 offen' % (self.csd[4 * i:4 * i + 4], vt[0], self.rW1), tag='cs')
            if i < 5:
                e('v_add_u32 %s, %d, %s' % (vt[0], 8 * 9216, vt[0]))

    def cs_reduce(self):
        e, v, s = self.e, self.v, self.s
        st, vt = self.st, self.vt
        x = v.alloc('csx', 8)
        e.wait_vm('cs')
        for i in range(6):
            for r in range(4):
                e('v_accvgpr_read_b32 %s, %s' % (vt[0], self.csd[4 * i + r]))
                if i == 0:
                    e('v_lshlrev_b32 %s, 16, %s' % (x[2 * r], vt[0]))
                    e('v_and_b32 %s, 0xffff0000, %s' % (x[2 * r + 1], vt[0]))
                else:
                    e('v_lshlrev_b32 %s, 16, %s' % (vt[1], vt[0]))
                    e('v_and_b32 %s, 0xffff0000, %s' % (vt[0], vt[0]))
                    e('v_add_f32 %s, %s, %s' % (x[2 * r], x[2 * r], vt[1]))
                    e('v_add_f32 %s, %s, %s' % (x[2 * r + 1], x[2 * r + 1], vt[0]))
        self.a.free(self.csd)
        for c in range(4):
            e('v_permlane32_swap_b32 %s, %s' % (x[c], x[c + 4]))
        for c in range(4):
            e('v_add_f32 %s, %s, %s' % (x[c], x[c], x[c + 4]))
        for c in range(2):
            e('v_permlane16_swap_b32 %s, %s' % (x[c], x[c + 2]))
        for c in range(2):
            e('v_add_f32 %s, %s, %s' % (x[c], x[c], x[c + 2]))
        for c in range(2):
            e('v_add_f32_dpp %s, %s, %s row_ror:8 row_mask:0xf bank_mask:0xf' % (x[2 + c], x[c], x[c]))
        e('v_and_b32 %s, 7, %s' % (vt[0], self.vL))
        e('v_lshlrev_b32 %s, 5, %s' % (vt[0], vt[0]))
        e('v_lshl_add_u32 %s, %s, 3, %s' % (vt[0], self.vQ, vt[0]))
        l = e.newlabel('L_nocs')
        e('s_cmp_ge_u32 %s, 216\ns_cbranch_scc1 %s' % (self.sN, l))
        e.maybe = True
        e('buffer_store_dwordx2 %s, %s, %s, %s offen sc1' % (x[2:4], vt[0], self.rWS, self.sCs))
        e.maybe = False
        e.label(l)
        v.free(x)
        s.free(self.sCs)

    def cs_flag(self):
        e, st, vt = self.e, self.st, self.vt
        e('s_lshl_b32 %s, %s, 2\ns_add_u32 %s, %s, %s' % (st[0], self.sW, st[0], st[0], self.sFlag))
        e('v_mov_b32 %s, 1' % vt[0])
        e('s_mov_b64 exec, 1')
        e('buffer_store_dword %s, %s, %s, %s offen offset:16 sc1' % (vt[0], self.vZ, self.rWS, st[0]))
        e('s_mov_b64 exec, -1')

    def after_p1_gemm(self, vD):
        e, v, s = self.e, self.v, self.s
        st, vt = self.st, self.vt
        rWO = self.srd('rWO', self.kp[4:6], 576 * 1152)
        l = e.newlabel('L_nowo')
        e('s_cmp_eq_u32 %s, 0\ns_cbranch_scc1 %s' % (self.sW, l))
        e.maybe = True
        e('s_mul_i32 %s, %s, 144' % (st[0], self.sQD))
        self.pitch144_offsets(vD, 1152, st[0], vt[0], vt[1], vt[2])
        e('s_sub_u32 %s, %s, 1' % (st[0], self.sW))
        e('s_mul_i32 %s, %s, %d' % (st[1], st[0], 3 * 9216))
        e('s_mul_i32 %s, %s, %d' % (st[0], st[0], 3 * 64 * 1152))
        for b in range(3):
            for i in range(9):
                e('s_add_u32 m0, %s, %d' % (st[1], b * 9216 + i * 1024))
                e('buffer_load_dwordx4 %s, %s, %s offen lds' % (vD[i], rWO, st[0]))
            if b < 2:
                e('s_add_u32 %s, %s, %d' % (st[0], st[0], 64 * 1152))
        e.maybe = False
        e.label(l)
        s.free(rWO)
        v.free(vD)
        self.xr = v.alloc('xr', 10)
        e('s_lshl_b32 %s, %s, 4\ns_add_u32 %s, %s, %s' % (st[0], self.sW, st[0], st[0], self.sU0))
        e('s_lshl_b32 %s, %s, 1\ns_add_u32 %s, %s, %s' % (st[0], st[0], st[0], st[0], self.sP))
        e('s_mul_i32 %s, %s, 1152\ns_mul_i32 %s, %s, 144\ns_add_u32 %s, %s, %s' % (st[0], st[0], st[1], self.sQD, st[0], st[0], st[1]))
        e('v_mul_u32_u24 %s, 2304, %s' % (vt[0], self.vN))
        e('v_lshl_add_u32 %s, %s, 3, %s' % (vt[0], self.vQ, vt[0]))
        e('v_add_u32 %s, %s, %s' % (vt[0], st[0], vt[0]))
        for T in range(5):
            e('buffer_load_dwordx2 %s, %s, %s, 0 offen offset:%d' % (self.xr[2 * T:2 * T + 2], vt[0], self.rX, 32 * T), tag='xr')

    def p2(self):
        e, v, a, s, cfg = self.e, self.v, self.a, self.s, self.cfg
        st, vt, vL, vN, vQ = self.st, self.vt, self.vL, self.vN, self.vQ
        self.vp = v.alloc('vp', 4)
        vF = v.alloc('vF')
        e('s_lshl_b32 %s, %s, 4\ns_add_u32 %s, %s, %s\ns_lshl_b32 %s, %s, 7' % (st[0], self.sG, st[0], st[0], self.sRH, st[0], st[0]))
        e('v_lshl_add_u32 %s, %s, 8, %s' % (vF, vL, st[0]))
        e('s_waitcnt vmcnt(0)')
        e('s_barrier')
        self.wave0(lambda: self.set_flag(1))
        v.free(self.ob)
        self.stamp('flag1')
        acc = [v.alloc('acc2', 4) for _ in range(5)]
        for T in range(5):
            for h in range(2):
                e('v_lshlrev_b32 %s, 16, %s' % (acc[T][2 * h], self.xr[2 * T + h]))
                e('v_and_b32 %s, 0xffff0000, %s' % (acc[T][2 * h + 1], self.xr[2 * T + h]))
        v.free(self.xr)
        self.cs_reduce()
        wa = {}
        vA = [self.vTr, v.alloc('vTr1')]
        e('v_add_u32 %s, %d, %s' % (vA[1], 10 * 4608, self.vTr))
        n = 0
        for ks in range(18):
            for T in range(5):
                wa[ks, T] = a.alloc('wa', 4) if n < 64 else v.alloc('wa', 4)
                n += 1
                for h in range(2):
                    e('ds_read_b64_tr_b16 %s, %s offset:%d' % (wa[ks, T][2 * h:2 * h + 2], vA[ks // 10], (ks % 10) * 4608 + 32 * T + 144 * h))
        v.free(vA)
        def body():
            self.poll(self.vZ, self.rDBG, 1, 256)
            self.poll(vF, self.rWS, 8, 1)
        self.wave0(body)
        ob = [v.alloc('ob2', 4) for _ in range(18)]
        e('s_add_u32 %s, %s, %d' % (st[0], self.sRT, WS_O))
        e('s_waitcnt lgkmcnt(0)')
        e('s_barrier')
        self.stamp('sync1')
        for ks in range(18):
            if ks and ks % 4 == 0:
                e('s_add_u32 %s, %s, 4096' % (st[0], st[0]))
            e('buffer_load_dwordx4 %s, %s, %s, %s offen offset:%d sc1' % (ob[ks], self.vL16, self.rWS, st[0], 1024 * (ks % 4)), tag=('o', ks))
        self.p3_setup()
        fill = []
        for t in range(3):
            fill += [(x, ('w', t)) for x in self.dma3(t)]
        for ks in range(18):
            e.wait_vm(('o', ks))
            if ks == 0:
                self.cs_flag()
            for T in range(5):
                self.mfma(acc[T], wa[ks, T], ob[ks], acc[T])
                if ks >= 2 and fill and T % 2 == 0:
                    x, tg = fill.pop(0)
                    e(x, tag=tg)
        for x, tg in fill:
            e(x, tag=tg)
        for r in wa.values():
            (a if r.f == 'a' else v).free(r)
        v.free(ob)
        pk = [v.alloc('pk', 4) for _ in range(3)]
        for T in range(5):
            for h in range(2):
                e('v_cvt_pk_bf16_f32 %s, %s, %s' % (pk[T >> 1][2 * (T & 1) + h], acc[T][2 * h], acc[T][2 * h + 1]))
        for h in range(2):
            e('v_mov_b32 %s, %s' % (pk[2][2 + h], pk[2][h]))
        self.vU = v.alloc('vU')
        e('v_lshrrev_b32 %s, 1, %s' % (vt[0], vQ))
        e('v_and_b32 %s, 1, %s' % (vt[1], vQ))
        e('v_lshl_add_u32 %s, %s, 1, %s' % (self.vU, vt[1], vt[0]))
        e('v_lshlrev_b32 %s, 4, %s' % (vt[0], vN))
        e('v_lshl_add_u32 %s, %s, 8, %s' % (vt[0], self.vU, vt[0]))
        e('s_mul_i32 %s, %s, 2304' % (st[1], self.sQD))
        e('s_add_u32 %s, %s, %s\ns_add_u32 %s, %s, %d' % (st[1], st[1], self.sRT, st[1], st[1], WS_H))
        for P in range(3):
            for h in range(2):
                e('v_permlane16_swap_b32 %s, %s' % (pk[P][h], pk[P][2 + h]))
        for P in range(3):
            if P == 2:
                e('s_mov_b64 exec, 0xffff')
            e('buffer_store_dwordx4 %s, %s, %s, %s offen offset:%d sc1' % (pk[P], vt[0], self.rWS, st[1], 1024 * P))
        e('s_mov_b64 exec, -1')
        sm = v.alloc('sm', 4)
        e('s_mov_b32 vcc_lo, -1\ns_mov_b32 vcc_hi, 0')
        for i in range(4):
            e('v_cndmask_b32 %s, 0, %s, vcc' % (acc[4][i], acc[4][i]))
        e('v_pk_add_f32 %s, %s, %s' % (sm[0:2], acc[0][0:2], acc[0][2:4]))
        e('v_pk_mul_f32 %s, %s, %s' % (sm[2:4], acc[0][0:2], acc[0][0:2]))
        e('v_pk_fma_f32 %s, %s, %s, %s' % (sm[2:4], acc[0][2:4], acc[0][2:4], sm[2:4]))
        for T in range(1, 5):
            for h in range(2):
                x = acc[T][2 * h:2 * h + 2]
                e('v_pk_add_f32 %s, %s, %s' % (sm[0:2], sm[0:2], x))
                e('v_pk_fma_f32 %s, %s, %s, %s' % (sm[2:4], x, x, sm[2:4]))
        e('v_add_f32 %s, %s, %s' % (sm[0], sm[0], sm[1]))
        e('v_add_f32 %s, %s, %s' % (sm[1], sm[2], sm[3]))
        for sw in ('v_permlane16_swap_b32', 'v_permlane32_swap_b32'):
            e('v_mov_b32 %s, %s\nv_mov_b32 %s, %s' % (sm[2], sm[0], sm[3], sm[1]))
            e('%s %s, %s\n%s %s, %s' % (sw, sm[0], sm[2], sw, sm[1], sm[3]))
            e('v_pk_add_f32 %s, %s, %s' % (sm[0:2], sm[0:2], sm[2:4]))
        e('s_lshl_b32 %s, %s, 1\ns_add_u32 %s, %s, %s' % (st[0], self.sG, st[0], st[0], self.sRH))
        e('s_lshl_b32 %s, %s, 3\ns_add_u32 %s, %s, %s' % (st[0], st[0], st[0], st[0], self.sQD))
        e('s_lshl_b32 %s, %s, 2\ns_add_u32 %s, %s, %s' % (st[0], st[0], st[0], st[0], self.sW))
        e('s_lshl_b32 %s, %s, 7\ns_add_u32 %s, %s, %d' % (st[0], st[0], st[0], st[0], WS_ST))
        e('v_lshlrev_b32 %s, 3, %s' % (vt[1], vN))
        e('s_mov_b64 exec, 0xffff')
        e('buffer_store_dwordx2 %s, %s, %s, %s offen sc1' % (sm[0:2], vt[1], self.rWS, st[0]))
        e('s_mov_b64 exec, -1')
        self.stamp('p2')
        e('s_lshl_b32 %s, %s, 11' % (st[0], self.sG))
        e('v_lshl_add_u32 %s, %s, 7, %s' % (vF, vL, st[0]))
        self.vF = vF
        e('s_waitcnt vmcnt(0)')
        e('s_barrier')
        self.wave0(lambda: self.set_flag(2))
        v.free(acc, pk, sm)
        s.free(self.sRT)
        self.stamp('flag2')

    SLOT3 = 36864
    L_TB = 4 * 36864
    L_RS = L_TB + 4608
    L_SH = L_RS + 512
    G1 = [(0, 0), (1, 0), (0, 1), (1, 1), (2, 0), (2, 1), (3, 0), (3, 1), ('h', None)]

    def p3_setup(self):
        e, v, s = self.e, self.v, self.s
        st, vt, vL, vQ = self.st, self.vt, self.vL, self.vQ
        self.rW2 = self.srd('rW2', self.kp[12:14], 4608 * 1152, shift=4096)
        self.vD3 = v.alloc('vD3', 9, 1)
        self.sMain = s.alloc('sMain3'); self.sHalf = s.alloc('sHalf3'); self.sR4 = s.alloc('sR4'); self.sCol = s.alloc('sCol')
        self.sOff3 = s.alloc('sOff3'); self.sM3 = s.alloc('sM3'); self.sCH = s.alloc('sCH'); self.sR3 = s.alloc('sR3'); self.sColE = s.alloc('sColE')
        e('s_and_b32 %s, %s, 1' % (st[0], self.sJ))
        e('s_lshl_b32 %s, %s, 5' % (self.sMain, st[0]))
        e('s_xor_b32 %s, %s, 1\ns_lshl_b32 %s, %s, 8' % (st[0], st[0], self.sHalf, st[0]))
        e('s_and_b32 %s, %s, 3' % (self.sR4, self.sG))
        self.mod9(self.sCol, self.sG, st[0])
        e('s_mov_b32 %s, %s' % (self.sColE, self.sCol))
        e('s_mul_i32 %s, %s, 9216' % (self.sM3, self.sW))
        e('s_and_b32 %s, %s, 1' % (self.sCH, self.sW))
        e('s_lshr_b32 %s, %s, 1' % (self.sR3, self.sW))
        for x in self.voff_w1():
            e(x)

    def voff_w1(self):
        st, vt, vL = self.st, self.vt, self.vL
        o = []
        o.append('v_lshrrev_b32 %s, 3, %s' % (vt[0], vL))
        o.append('v_mul_u32_u24 %s, 9216, %s' % (vt[0], vt[0]))
        o.append('s_mul_i32 %s, %s, %d\ns_mul_i32 %s, %s, 576\ns_add_u32 %s, %s, %s' % (st[0], self.sW, 72 * 9216, st[1], self.sJ, st[0], st[0], st[1]))
        o.append('v_add_u32 %s, %s, %s' % (vt[0], st[0], vt[0]))
        o.append('v_and_b32 %s, 7, %s' % (vt[1], vL))
        o.append('v_bfe_u32 %s, %s, 4, 1' % (vt[2], vL))
        o.append('v_lshlrev_b32 %s, 1, %s' % (vt[2], vt[2]))
        o.append('v_xor_b32 %s, %s, %s' % (vt[1], vt[1], vt[2]))
        o.append('s_and_b32 %s, %s, 1\ns_lshl_b32 %s, %s, 2' % (st[0], self.sW, st[0], st[0]))
        o.append('v_xor_b32 %s, %s, %s' % (vt[1], st[0], vt[1]))
        o.append('v_xor_b32 %s, 4, %s' % (vt[2], vt[1]))
        o.append('v_lshl_add_u32 %s, %s, 4, %s' % (vt[1], vt[1], vt[0]))
        o.append('v_lshl_add_u32 %s, %s, 4, %s' % (vt[2], vt[2], vt[0]))
        for i in range(9):
            o.append('v_add_u32 %s, %d, %s' % (self.vD3[i], i * 8 * 9216 + 4096 - 1024 * (i % 4), vt[1 + (i & 1)]))
        return o

    def voff_w1half(self):
        st, vt, vL = self.st, self.vt, self.vL
        o = []
        o.append('v_lshrrev_b32 %s, 2, %s' % (vt[0], vL))
        o.append('v_mul_u32_u24 %s, 9216, %s' % (vt[0], vt[0]))
        o.append('s_mul_i32 %s, %s, %d\ns_mul_i32 %s, %s, 576\ns_add_u32 %s, %s, %s' % (st[0], self.sW, 144 * 9216, st[1], self.sJ, st[0], st[0], st[1]))
        o.append('v_add_u32 %s, %s, %s' % (vt[0], st[0], vt[0]))
        o.append('v_and_b32 %s, 3, %s' % (vt[1], vL))
        o.append('v_lshrrev_b32 %s, 5, %s' % (vt[2], vL))
        o.append('v_lshlrev_b32 %s, 1, %s' % (vt[2], vt[2]))
        o.append('v_xor_b32 %s, %s, %s' % (vt[1], vt[1], vt[2]))
        o.append('v_lshl_add_u32 %s, %s, 4, %s' % (vt[1], vt[1], vt[0]))
        for i in range(9):
            o.append('v_add_u32 %s, %d, %s' % (self.vD3[i], i * 16 * 9216 + 4096 - 1024 * (i % 4), vt[1]))
        return o

    def voff_w2(self):
        st, vt, vL, vQ = self.st, self.vt, self.vL, self.vQ
        o = []
        o.append('v_lshrrev_b32 %s, 3, %s' % (vt[0], vL))
        o.append('v_mul_u32_u24 %s, 1152, %s' % (vt[0], vt[0]))
        o.append('v_and_b32 %s, 7, %s' % (vt[1], vL))
        o.append('v_lshlrev_b32 %s, 1, %s' % (vt[2], vQ))
        o.append('v_xor_b32 %s, %s, %s' % (vt[1], vt[1], vt[2]))
        o.append('v_lshl_add_u32 %s, %s, 4, %s' % (vt[0], vt[1], vt[0]))
        for i in range(9):
            x = 's_mul_i32 %s, %s, 9\ns_add_u32 %s, %s, %d\n' % (st[0], self.sW, st[0], st[0], i)
            x += 's_lshr_b32 %s, %s, 3\ns_add_u32 %s, %s, %s\ns_and_b32 %s, %s, 3\n' % (st[1], st[0], st[1], st[1], self.sR4, st[1], st[1])
            x += 's_lshl_b32 %s, %s, 6\ns_add_u32 %s, %s, %s' % (st[1], st[1], st[1], st[1], self.sMain)
            o.append(x)
            x = 's_cmp_ge_u32 %s, 32\ns_cselect_b32 %s, %s, %s\n' % (st[0], st[1], self.sHalf, st[1])
            x += 's_and_b32 %s, %s, 7\ns_lshl_b32 %s, %s, 3\ns_add_u32 %s, %s, %s' % (st[0], st[0], st[0], st[0], st[0], st[0], st[1])
            o.append(x)
            x = 's_mul_i32 %s, %s, 288\ns_add_u32 %s, %s, %s\ns_mul_i32 %s, %s, 1152\n' % (st[1], self.sJ, st[0], st[0], st[1], st[0], st[0])
            x += 's_add_u32 %s, %s, %d\nv_add_u32 %s, %s, %s' % (st[0], st[0], 4096 - 1024 * (i % 4), self.vD3[i], st[0], vt[0])
            o.append(x)
        return o

    def dma3(self, n):
        o = []
        so = self.sOff3
        if n < 9:
            c, kh = self.G1[n]
            if c == 'h':
                o.append('s_lshl_b32 %s, %s, 1' % (so, self.sHalf))
            else:
                o.append('s_add_u32 %s, %s, %d\ns_and_b32 %s, %s, 3\ns_lshl_b32 %s, %s, 6' % (so, self.sR4, c, so, so, so, so))
                o.append('s_add_u32 %s, %s, %s\ns_lshl_b32 %s, %s, 1\ns_add_u32 %s, %s, %d' % (so, so, self.sMain, so, so, so, so, kh * 288 * 9216))
            srd = self.rW1
        else:
            o.append('s_lshl_b32 %s, %s, 7' % (so, self.sCol))
            o.append('s_add_u32 %s, %s, 1\ns_cmp_eq_u32 %s, 9\ns_cselect_b32 %s, 0, %s' % (self.sCol, self.sCol, self.sCol, self.sCol, self.sCol))
            srd = self.rW2
        for i in range(9):
            if i % 4 == 0:
                o.append('s_add_u32 m0, %s, %d' % (self.sM3, (n % 4) * self.SLOT3 + 1024 * i))
            o.append('buffer_load_dwordx4 %s, %s, %s offen offset:%d lds' % (self.vD3[i], srd, so, 1024 * (i % 4)))
        return o

    def aug_table(self):
        e, v, s = self.e, self.v, self.s
        st, vt, vL = self.st, self.vt, self.vL
        rB1 = self.srd('rB1', self.kp[10:12], 4608 * 2)
        e('v_mul_u32_u24 %s, 52, %s\nv_lshrrev_b32 %s, 8, %s' % (vt[0], vL, vt[0], vt[0]))
        e('v_mul_u32_u24 %s, 67, %s' % (vt[0], vt[0]))
        e('s_mul_i32 %s, %s, 9\ns_lshr_b32 %s, %s, 1' % (st[0], self.sJ, st[0], st[0]))
        e('v_add3_u32 %s, %s, %s, %s' % (vt[0], vt[0], vL, st[0]))
        e('v_lshlrev_b32 %s, 7, %s' % (vt[0], vt[0]))
        e('v_add_u32 %s, 16, %s' % (vt[1], vt[0]))
        self.poll(vt[1], self.rWS, 15, 1, width=4)
        pp = v.alloc('csp', 24); bb = v.alloc('b1')
        e('s_mul_i32 %s, %s, 288\ns_mul_i32 %s, %s, 72\ns_add_u32 %s, %s, %s' % (st[0], self.sJ, st[1], self.sW, st[0], st[0], st[1]))
        e('v_lshl_add_u32 %s, %s, 1, %s' % (vt[0], vL, st[0]))
        e('v_lshlrev_b32 %s, 1, %s' % (vt[1], vt[0]))
        e('v_lshlrev_b32 %s, 2, %s' % (vt[0], vt[0]))
        e('s_mov_b32 exec_lo, -1\ns_mov_b32 exec_hi, 15')
        e('buffer_load_dword %s, %s, %s, 0 offen' % (bb, vt[1], rB1), tag='csp')
        e('s_mov_b32 %s, %d' % (st[0], WS_CS))
        for i in range(12):
            e('buffer_load_dwordx2 %s, %s, %s, %s offen sc1' % (pp[2 * i:2 * i + 2], vt[0], self.rWS, st[0]), tag='csp')
            if i < 11:
                e('s_add_u32 %s, %s, %d' % (st[0], st[0], 4608 * 4))
        e('s_mov_b64 exec, -1')
        s.free(rB1)
        self.pp, self.bb = pp, bb

    def aug_table2(self):
        e, v, s = self.e, self.v, self.s
        st, vt, vL = self.st, self.vt, self.vL
        pp, bb = self.pp, self.bb
        e.wait_vm('csp')
        for i in range(1, 12):
            e('v_pk_add_f32 %s, %s, %s' % (pp[0:2], pp[0:2], pp[2 * i:2 * i + 2]))
        for c in range(2):
            q = pp[4 + 4 * c:8 + 4 * c]
            e('v_cvt_pk_bf16_f32 %s, %s, %s' % (vt[0], pp[c], pp[c]))
            e('v_and_b32 %s, 0xffff0000, %s' % (vt[1], vt[0]))
            e('v_sub_f32 %s, %s, %s' % (vt[1], pp[c], vt[1]))
            e('v_cvt_pk_bf16_f32 %s, %s, %s' % (q[0], pp[c], vt[1]))
            e('v_mov_b32 %s, %s' % (q[1], q[0]))
            e('s_mov_b32 %s, 0x%x' % (st[0], 0x01000100 if c == 0 else 0x03020302))
            e('v_perm_b32 %s, %s, %s, %s' % (q[2], bb, bb, st[0]))
            e('v_mov_b32 %s, 0' % q[3])
        e('s_mul_i32 %s, %s, %d\ns_add_u32 %s, %s, %d' % (st[0], self.sW, 72 * 16, st[0], st[0], self.L_TB))
        e('v_lshl_add_u32 %s, %s, 5, %s' % (vt[0], vL, st[0]))
        e('s_mov_b32 exec_lo, -1\ns_mov_b32 exec_hi, 15')
        e('ds_write_b128 %s, %s' % (vt[0], pp[4:8]))
        e('ds_write_b128 %s, %s offset:16' % (vt[0], pp[8:12]))
        e('s_mov_b64 exec, -1')
        v.free(pp, bb)

    def p3(self):
        e, v, a, s, cfg = self.e, self.v, self.a, self.s, self.cfg
        st, vt, vL, vN, vQ = self.st, self.vt, self.vL, self.vN, self.vQ
        SL = self.SLOT3
        self.aug_table()
        vA = v.alloc('vA', 2, 1); vH = v.alloc('vH')
        e('v_bfe_u32 %s, %s, 2, 2' % (vt[0], vL))
        e('v_lshl_add_u32 %s, %s, 3, %s' % (vt[0], vQ, vt[0]))
        e('v_and_b32 %s, 3, %s\nv_lshlrev_b32 %s, 3, %s' % (vt[1], vL, vt[1], vt[1]))
        e('v_bfe_u32 %s, %s, 3, 2' % (vt[2], vL))
        e('s_lshl_b32 %s, %s, 1' % (st[0], self.sCH))
        e('v_xor_b32 %s, %s, %s' % (vt[2], st[0], vt[2]))
        e('v_lshl_add_u32 %s, %s, 7, %s' % (vt[3], vt[0], vt[1]))
        e('v_lshl_add_u32 %s, %s, 5, %s' % (vA[0], vt[2], vt[3]))
        e('v_xor_b32 %s, 32, %s' % (vA[1], vA[0]))
        e('v_lshl_add_u32 %s, %s, 6, %s' % (vt[3], vt[0], vt[1]))
        e('v_and_b32 %s, 1, %s' % (vt[2], vQ))
        e('v_xor_b32 %s, %s, %s' % (vt[2], self.sCH, vt[2]))
        e('v_lshl_add_u32 %s, %s, 5, %s' % (vH, vt[2], vt[3]))
        self.aug_table2()
        self.wave0(lambda: self.poll(self.vF, self.rWS, 16, 2))
        hb = {}
        n = 0
        for ks in range(18):
            for rt in range(4):
                hb[rt, ks] = a.alloc('hb', 4) if n < 64 else v.alloc('hb', 4)
                n += 1
        sH = [s.alloc('sH') for _ in range(4)]
        e('s_lshl_b32 %s, %s, 1\ns_add_u32 %s, %s, %s\ns_lshl_b32 %s, %s, 2' % (st[0], self.sG, st[0], st[0], self.sR3, st[1], st[0]))
        e('s_mul_i32 %s, %s, 18432\ns_add_u32 %s, %s, %d' % (st[1], st[1], sH[0], st[1], WS_H))
        for rt in range(1, 4):
            e('s_add_u32 %s, %s, 18432' % (sH[rt], sH[rt - 1]))
        e('s_lshl_b32 %s, %s, 12\ns_add_u32 %s, %s, %d' % (st[0], st[0], st[0], st[0], WS_ST))
        e('v_lshlrev_b32 %s, 3, %s' % (vt[3], vL))
        sv = v.alloc('sv3', 16)
        e('s_waitcnt lgkmcnt(0)')
        e('s_barrier')
        self.stamp('sync2')
        def hload(ks):
            o = []
            for rt in range(4):
                x = ''
                if ks and ks % 4 == 0:
                    x = 's_add_u32 %s, %s, 4096\n' % (sH[rt], sH[rt])
                o.append((x + 'buffer_load_dwordx4 %s, %s, %s, %s offen offset:%d sc1' % (hb[rt, ks], self.vL16, self.rWS, sH[rt], 1024 * (ks % 4)), ('h', ks)))
            return o
        for ks in range(9):
            for x, tg in hload(ks):
                e(x, tag=tg)
        for i in range(8):
            e('buffer_load_dwordx2 %s, %s, %s, %s offen offset:%d sc1' % (sv[2 * i:2 * i + 2], vt[3], self.rWS, st[0], 512 * i), tag='sv3')

        acc = [[[v.alloc('acc3', 4) for rt in range(4)] for T in range(2)] for b in range(2)]
        own = [[v.alloc('own', 4) for rt in range(4)] for c in range(4)]
        NF = 3
        fr = [v.alloc('fr', 4) for _ in range(NF)]
        baug = [v.alloc('baug', 4) for _ in range(4)]
        aaug = [v.alloc('aaug', 4) for _ in range(2)]
        vTb = v.alloc('vTb')
        e('s_lshl_b32 %s, %s, 9\ns_add_u32 %s, %s, %d' % (st[1], self.sCH, st[1], st[1], self.L_TB))
        e('v_lshl_add_u32 %s, %s, 4, %s' % (vTb, vN, st[1]))

        def stats_items():
            o = []
            o.append(('WAITVM', 'sv3'))
            for i in range(1, 8):
                o.append('v_pk_add_f32 %s, %s, %s' % (sv[0:2], sv[0:2], sv[2 * i:2 * i + 2]))
            o.append('s_mov_b32 %s, 0x%x' % (st[2], f2u(1.0 / 576)))
            o.append('v_mul_f32 %s, %s, -%s' % (sv[0], st[2], sv[0]))
            o.append('v_mul_f32 %s, %s, %s' % (sv[2], sv[0], sv[0]))
            o.append('v_fma_f32 %s, %s, %s, -%s' % (sv[1], sv[1], st[2], sv[2]))
            o.append('v_max_f32 %s, 0, %s' % (sv[1], sv[1]))
            o.append('v_add_f32 %s, 0x%x, %s' % (sv[1], f2u(1e-5), sv[1]))
            o.append('v_sqrt_f32 %s, %s' % (sv[2], sv[1]))
            o.append('v_rcp_f32 %s, %s' % (sv[3], sv[1]))
            o.append('v_cvt_pk_bf16_f32 %s, %s, %s' % (sv[4], sv[0], sv[0]))
            o.append('v_and_b32 %s, 0xffff0000, %s' % (sv[5], sv[4]))
            o.append('v_sub_f32 %s, %s, %s' % (sv[5], sv[0], sv[5]))
            o.append('v_cvt_pk_bf16_f32 %s, %s, %s' % (sv[5], sv[5], sv[5]))
            o.append('v_cvt_pk_bf16_f32 %s, %s, %s' % (sv[6], sv[2], sv[2]))
            o.append('v_and_b32 %s, 0xffff0000, %s' % (sv[6], sv[6]))
            o.append('v_sub_f32 %s, %s, %s' % (sv[6], sv[2], sv[6]))
            o.append('v_cvt_pk_bf16_f32 %s, %s, %s' % (sv[6], sv[2], sv[6]))
            o.append('s_lshl_b32 %s, %s, 8\ns_add_u32 %s, %s, %d' % (st[2], self.sR3, st[2], st[2], self.L_RS))
            o.append('v_lshl_add_u32 %s, %s, 2, %s' % (sv[7], vL, st[2]))
            o.append('ds_write_b32 %s, %s' % (sv[7], sv[3]))
            for rt in range(4):
                o.append('v_cmp_eq_u32 vcc, %d, %s\nv_mov_b32 %s, 0' % (rt, vQ, baug[rt][3]))
                for i in range(3):
                    o.append('v_cndmask_b32 %s, 0, %s, vcc' % (baug[rt][i], sv[4 + i]))
            return o

        def epi1(buf, c, Ts=(0, 1), dst=None):
            o = []
            for rt in range(4):
                for T in Ts:
                    x = acc[buf][T][rt]
                    d = own[c][rt][2 * T:2 * T + 2] if dst is None else dst[rt]
                    for i in range(4):
                        o.append('v_mul_f32 %s, %s, |%s|' % (x[i], x[i], x[i]))
                    for h in range(2):
                        o.append('v_cvt_pk_bf16_f32 %s, %s, %s' % (d[h], x[2 * h], x[2 * h + 1]))
                    for h in range(2):
                        o.append('v_pk_max_i16 %s, %s, 0' % (d[h], d[h]))
            return o

        sib = {}
        vB = {}
        frags = []
        for n in range(18):
            if n < 8:
                c, kh = self.G1[n]
                buf = c & 1
                for ee in range(9):
                    for T in range(2):
                        frags.append(dict(n=n, addr=('A', T), off=ee * 4096, step=512,
                                          mm=[(acc[buf][T][rt], ('hb', rt, kh * 9 + ee), kh == 0 and ee == 0) for rt in range(4)], h=kh * 9 + ee))
            elif n == 8:
                for ee in range(18):
                    frags.append(dict(n=n, addr=('H', 0), off=ee * 2048, step=256,
                                      mm=[(acc[0][0][rt], ('hb', rt, ee), ee == 0) for rt in range(4)], h=ee))
            else:
                buf = n & 1
                ks = [('own', c) for c in range(4)] + [('sib', c) for c in range(4)] + [('sh', 4)]
                for i, (kind, c) in enumerate(ks):
                    for T in range(2):
                        frags.append(dict(n=n, addr=(kind, T), off=c * 8192, step=2048,
                                          mm=[(acc[buf][T][rt], (kind, rt, c), i == 0) for rt in range(4)], h=None))
        def areg(ad):
            if ad[0] == 'A':
                return vA[ad[1]]
            if ad[0] == 'H':
                return vH
            return vB[ad]
        def breg(b):
            if b[0] == 'hb':
                return hb[b[1], b[2]]
            if b[0] == 'own':
                return own[b[2]][b[1]]
            return sib[b]
        LA = 2
        def rd(i):
            f = frags[i]
            return [('ds_read_b64_tr_b16 %s, %s offset:%d' % (fr[i % NF][2 * h:2 * h + 2], areg(f['addr']), f['off'] + f['step'] * h), ('fr', i)) for h in range(2)]
        def bump(regs, n):
            d = ((n + 1) % 4 - n % 4) * SL
            return [('v_add_u32 %s, 0x%x, %s' % (r, d & 0xffffffff, r), None) for r in regs]

        vP = v.alloc('vP', 4, 1)
        sPo = s.alloc('sPo')
        def epi2(buf):
            o = [('s_lshl_b32 %s, %s, 14' % (sPo, self.sColE), None),
                 ('s_add_u32 %s, %s, 1\ns_cmp_eq_u32 %s, 9\ns_cselect_b32 %s, 0, %s' % (self.sColE, self.sColE, self.sColE, self.sColE, self.sColE), None)]
            for rt in range(4):
                x, y = acc[buf][0][rt], acc[buf][1][rt]
                o.append(('v_cvt_pk_bf16_f32 %s, %s, %s' % (x[0], x[0], x[1]), None))
                o.append(('v_cvt_pk_bf16_f32 %s, %s, %s' % (x[1], x[2], x[3]), None))
                o.append(('v_cvt_pk_bf16_f32 %s, %s, %s' % (x[2], y[0], y[1]), None))
                o.append(('v_cvt_pk_bf16_f32 %s, %s, %s' % (x[3], y[2], y[3]), None))
                o.append(('buffer_store_dwordx4 %s, %s, %s, %s offen sc1' % (x, vP[rt], self.rWS, sPo), 'pst'))
            return o

        vXw = v.alloc('vXw'); vXr = v.alloc('vXr'); vSw = v.alloc('vSw'); vSr = v.alloc('vSr')
        hown = None
        def T_(l, tag=None):
            return [x if isinstance(x, tuple) else (x, tag) for x in l]

        def emit(item):
            x, tg = item
            if x == 'WAITVM':
                e.wait_vm(tg)
            elif x == 'WAITLG':
                e.wait_lg(tg)
            else:
                e(x, tag=tg)

        e.wait_vm(('w', 0))
        e('s_barrier')
        for i in range(LA):
            for it in rd(i):
                emit(it)
        for n in range(18):
            fill = []
            pre = {}
            dn = n + 3 if n <= 7 else (None if n == 8 else n + 2)
            if dn is not None and dn > 17:
                dn = None
            if n == 0:
                for ks in range(9, 18):
                    fill += hload(ks)
            if n == 1:
                fill += T_(stats_items())
            if dn == 8:
                fill += T_(self.voff_w1half())
            if dn == 9:
                fill += T_(self.voff_w2())
            dm = [(x, ('w', dn)) for x in self.dma3(dn)] if dn is not None else []
            ep = []
            if n in (3, 4, 6, 8):
                c = {3: 0, 4: 1, 6: 2, 8: 3}[n]
                ep = T_(epi1(c & 1, c))
            if n == 7:
                x = []
                x.append('s_lshl_b32 %s, %s, 13' % (st[0], self.sW))
                x.append('v_add_u32 %s, %s, %s' % (vXw, st[0], self.vL16))
                x.append('v_xor_b32 %s, 0x2000, %s' % (vXr, vXw))
                x.append('s_lshl_b32 %s, %s, 12\ns_add_u32 %s, %s, %d' % (st[0], self.sR3, st[0], st[0], self.L_SH))
                x.append('v_add_u32 %s, %s, %s' % (vSr, st[0], self.vL16))
                x.append('s_lshl_b32 %s, %s, 3' % (st[0], self.sCH))
                x.append('v_add_u32 %s, %s, %s' % (vSw, st[0], vSr))
                x.append('v_add_u32 %s, %d, %s\nv_add_u32 %s, %d, %s' % (vXw, 3 * SL, vXw, vXr, 3 * SL, vXr))
                for kind in ('own', 'sib', 'sh'):
                    for T in range(2):
                        vB[kind, T] = v.alloc('vB')
                x.append('v_lshrrev_b32 %s, 2, %s' % (vt[0], vL))
                x.append('v_and_b32 %s, 3, %s\nv_lshlrev_b32 %s, 3, %s' % (vt[1], vL, vt[1], vt[1]))
                x.append('v_lshl_add_u32 %s, %s, 7, %s' % (vt[1], vt[0], vt[1]))
                x.append('v_bfe_u32 %s, %s, 3, 2' % (vt[2], vL))
                x.append('s_lshl_b32 %s, %s, 1' % (st[0], self.sCH))
                x.append('v_xor_b32 %s, %s, %s' % (vt[2], st[0], vt[2]))
                x.append('v_lshl_add_u32 %s, %s, 5, %s' % (vt[1], vt[2], vt[1]))
                x.append('v_add_u32 %s, %d, %s' % (vB['sh', 0], SL, vt[1]))
                x.append('v_xor_b32 %s, 32, %s' % (vt[1], vt[1]))
                x.append('v_add_u32 %s, %d, %s' % (vB['sh', 1], SL, vt[1]))
                x.append('s_lshl_b32 %s, %s, 12\ns_xor_b32 %s, %s, 0x1000' % (st[0], self.sCH, st[1], st[0]))
                for T in range(2):
                    x.append('v_add_u32 %s, %s, %s' % (vB['own', T], st[0], vB['sh', T]))
                    x.append('v_add_u32 %s, %s, %s' % (vB['sib', T], st[1], vB['sh', T]))
                x.append('s_lshl_b32 %s, %s, 4\ns_lshl_b32 %s, %s, 3\ns_add_u32 %s, %s, %s' % (st[0], self.sG, st[1], self.sR3, st[0], st[0], st[1]))
                x.append('s_add_u32 %s, %s, %s\ns_mul_i32 %s, %s, %d' % (st[0], st[0], self.sCH, st[0], st[0], 9 * 16384))
                x.append('s_lshl_b32 %s, %s, 10\ns_add_u32 %s, %s, %s\ns_add_u32 %s, %s, %d' % (st[1], self.sJ, st[0], st[0], st[1], st[0], st[0], WS_P))
                x.append('v_add_u32 %s, %s, %s' % (vP[0], st[0], self.vL16))
                for rt in range(1, 4):
                    x.append('v_add_u32 %s, %d, %s' % (vP[rt], rt * 2 * 9 * 16384, vP[0]))
                fill += T_(x)
            if n == 8:
                w = [('ds_write_b128 %s, %s offset:%d' % (vXw, own[c][rt], (c * 4 + rt) * 1024), 'xw') for c in range(2) for rt in range(4)]
                ep = ep[:16] + sum([[w[i]] + ep[16 + 6 * i:22 + 6 * i] for i in range(8)], [])
            if n == 9:
                for r in hb.values():
                    (a if r.f == 'a' else v).free(r)
                for c in range(4):
                    for rt in range(4):
                        sib['sib', rt, c] = a.alloc('sib', 4)
                for rt in range(4):
                    sib['sh', rt, 4] = a.alloc('sh', 4)
                hown = [v.alloc('hown', 2) for _ in range(4)]
                x1 = [('ds_read_b128 %s, %s offset:%d' % (sib['sib', rt, c], vXr, (c * 4 + rt) * 1024), ('sibr', c)) for c in range(2) for rt in range(4)]
                x1.append(('v_add_u32 %s, 0x%x, %s\nv_add_u32 %s, 0x%x, %s' % (vXw, (-3 * SL) & 0xffffffff, vXw, vXr, (-3 * SL) & 0xffffffff, vXr), None))
                w = [('ds_write_b128 %s, %s offset:%d' % (vXw, own[c][rt], ((c - 2) * 4 + rt) * 1024), 'xw') for c in (2, 3) for rt in range(4)]
                eh = T_(epi1(0, None, Ts=(0,), dst=hown))
                w2 = [('ds_write_b64 %s, %s offset:%d' % (vSw, hown[rt], rt * 1024), 'xw') for rt in range(4)]
                first = x1 + sum([[w[2 * i]] + eh[8 * i:8 * i + 4] + [w[2 * i + 1]] + eh[8 * i + 4:8 * i + 8] + [w2[i]] for i in range(4)], [])
                x2 = [('ds_read_b128 %s, %s offset:%d' % (sib['sib', rt, c], vXr, ((c - 2) * 4 + rt) * 1024), ('sibr', c)) for c in (2, 3) for rt in range(4)]
                x2 += [('ds_read_b128 %s, %s offset:%d' % (sib['sh', rt, 4], vSr, rt * 1024), ('sibr', 4)) for rt in range(4)]
                second = x2 + dm
                dm = []
            if n >= 10:
                ep = epi2((n - 1) & 1)
            rest = []
            tot = len(dm) + len(ep)
            di = ei = 0
            for k_ in range(tot):
                if ei >= len(ep) or (di < len(dm) and di * len(ep) <= ei * len(dm)):
                    rest.append(dm[di]); di += 1
                else:
                    rest.append(ep[ei]); ei += 1
            fill += rest
            plans = [(0, 16, fill)] if n != 9 else [(0, 8, first), (8, 16, second)]
            sched = {i: [] for i in range(18)}
            for lo, hi, items in plans:
                for k_, it in enumerate(items):
                    sched[lo + k_ * (hi - lo) // max(1, len(items))].append(it)
            augc = None
            if n < 8 and self.G1[n][1] == 1:
                augc = self.G1[n][0]
            if n == 8:
                augc = 'h'
            if augc is not None:
                if augc == 'h':
                    x = 's_lshl_b32 %s, %s, 8\ns_lshl_b32 %s, %s, 4\ns_sub_u32 %s, %s, %s' % (st[0], self.sCH, st[1], self.sHalf, st[0], st[1], st[0])
                else:
                    x = 's_add_u32 %s, %s, %d\ns_and_b32 %s, %s, 3\ns_lshl_b32 %s, %s, 6\n' % (st[0], self.sR4, augc, st[0], st[0], st[0], st[0])
                    x += 's_add_u32 %s, %s, %s\ns_lshl_b32 %s, %s, 4' % (st[0], st[0], self.sMain, st[0], st[0])
                sched[16].append((x + '\nv_add_u32 %s, %s, %s' % (vt[3], st[0], vTb), None))
                for T in range(1 if augc == 'h' else 2):
                    sched[16].append(('ds_read_b128 %s, %s offset:%d' % (aaug[T], vt[3], 256 * T), 'aug'))
            for i in range(18):
                gi = n * 18 + i
                f = frags[gi]
                head = []
                if n == 9 and i == 8:
                    e('s_waitcnt lgkmcnt(0)')
                    e('s_barrier')
                if i == 18 - LA and n < 17:
                    head.append(('WAITVM', ('w', n + 1)))
                    if n == 8:
                        head.append(('WAITLG', 'xw'))
                    head.append(('s_barrier', None))
                    if n < 7:
                        head += bump([vA[0], vA[1]], n)
                    elif n >= 9:
                        head += bump(list(vB.values()), n)
                if gi + LA < len(frags):
                    head += rd(gi + LA)
                items = head + sched[i]
                e.wait_lg(('fr', gi))
                if f['h'] is not None and n < 4:
                    e.wait_vm(('h', f['h']))
                if n == 9 and f['addr'][0] != 'own':
                    e.wait_lg(('sibr', f['mm'][0][1][2]))
                per = -(-len(items) // 4)
                for m, (d, b, first_) in enumerate(f['mm']):
                    self.mfma(d, fr[gi % NF], breg(b), 0 if first_ else d)
                    for it in items[m * per:(m + 1) * per]:
                        emit(it)
            if augc is not None:
                e.wait_lg('aug')
                buf = 0 if augc == 'h' else augc & 1
                for T in range(1 if augc == 'h' else 2):
                    for rt in range(4):
                        self.mfma(acc[buf][T][rt], aaug[T], baug[rt], acc[buf][T][rt])
            if n == 1:
                v.free(sv)
            if n in (3, 8):
                self.stamp('st%d' % n)
        self.stamp('gemm2')
        for it in epi2(17 & 1):
            emit(it)
        v.free(own, fr, baug, aaug, vTb, vA, vH, vXw, vXr, vSw, vSr, hown, list(vB.values()), vP, self.vD3)
        for r in sib.values():
            a.free(r)
        self.acc3 = acc
        s.free(sH, sPo)

    def p4(self):
        e, v, a, s, cfg = self.e, self.v, self.a, self.s, self.cfg
        st, vt, vL, vN, vQ = self.st, self.vt, self.vL, self.vN, self.vQ
        rB2 = self.srd('rB2', self.kp[14:16], 576 * 2)
        rO = self.srd('rOut', self.kq[0:2], 2048 * 1152)
        hh = [v.alloc('hh', 4) for _ in range(3)]
        bb = [v.alloc('bb', 4) for _ in range(3)]
        vRs = v.alloc('vRs'); vOut = v.alloc('vOut')
        sB = s.alloc('sB'); sHh = s.alloc('sHh'); sPp = s.alloc('sPp')
        e('s_lshr_b32 %s, %s, 1\ns_and_b32 %s, %s, 1' % (st[0], self.sJ, st[1], self.sJ))
        e('s_lshl_b32 %s, %s, 6\ns_add_u32 %s, %s, %d' % (st[2], st[0], st[2], st[2], self.L_RS))
        e('v_lshl_add_u32 %s, %s, 2, %s' % (vt[0], vN, st[2]))
        e('ds_read_b32 %s, %s' % (vRs, vt[0]), tag='rs')
        e('s_lshl_b32 %s, %s, 7\ns_lshl_b32 %s, %s, 6\ns_add_u32 %s, %s, %s' % (sB, self.sW, st[1], st[1], sB, sB, st[1]))
        e('s_lshl_b32 %s, %s, 3\ns_add_u32 %s, %s, %s\ns_mul_i32 %s, %s, 18432' % (st[2], self.sG, st[2], st[2], st[0], st[2], st[2]))
        e('s_lshl_b32 %s, %s, 4\ns_add_u32 %s, %s, %s\ns_add_u32 %s, %s, %d' % (sHh, sB, sHh, sHh, st[2], sHh, sHh, WS_H))
        e('v_lshlrev_b32 %s, 4, %s' % (vt[1], vN))
        e('v_lshl_add_u32 %s, %s, 8, %s' % (vt[1], self.vU, vt[1]))
        e('v_lshlrev_b32 %s, 4, %s' % (vt[2], self.vU))
        e('s_lshr_b32 %s, %s, 1\ns_lshl_b32 %s, %s, 3\ns_add_u32 %s, %s, %s' % (st[2], self.sG, st[2], st[2], st[2], st[2], st[0]))
        e('s_lshl_b32 %s, %s, 5\ns_add_u32 %s, %s, %s\ns_mul_i32 %s, %s, 1152' % (st[2], st[2], st[2], st[2], self.sP, st[2], st[2]))
        e('v_mul_u32_u24 %s, 2304, %s' % (vOut, vN))
        e('v_add3_u32 %s, %s, %s, %s' % (vOut, vOut, vt[2], st[2]))
        e('s_mul_i32 %s, %s, %d\ns_lshl_b32 %s, %s, 14\ns_add_u32 %s, %s, %s' % (sPp, self.sN, 9 * 16384, st[1], self.sW, sPp, sPp, st[1]))
        e('s_add_u32 %s, %s, %d' % (sPp, sPp, WS_P))
        e('s_waitcnt vmcnt(0)')
        e('s_barrier')
        self.wave0(lambda: self.set_flag(3))
        v.free(self.acc3)
        self.stamp('flag3')
        def resid(u):
            e('s_add_u32 %s, %s, %d' % (st[0], sHh, u * 8192))
            e('buffer_load_dwordx4 %s, %s, %s, %s offen sc1' % (hh[u], vt[1], self.rWS, st[0]), tag=('hh', u))
            e('buffer_load_dwordx4 %s, %s, %s, %s offen offset:%d' % (bb[u], vt[2], rB2, sB, 512 * u), tag=('hh', u))
        resid(0); resid(1)
        self.wave0(lambda: (resid(2), self.poll(self.vF, self.rWS, 16, 3)))
        e('s_barrier')
        self.stamp('sync3')
        pd = [[v.alloc('pd', 4) for _ in range(16)] for u in range(2)]
        x = v.alloc('x4', 8)
        def loads(u):
            for j in range(16):
                if j % 4 == 0:
                    e('s_add_u32 %s, %s, %d' % (st[0], sPp, u * 65536 + j * 1024))
                e('buffer_load_dwordx4 %s, %s, %s, %s offen offset:%d sc1' % (pd[u & 1][j], self.vL16, self.rWS, st[0], 1024 * (j % 4)), tag=('pd', u, j))
        def unit(u, exact):
            for j in range(16):
                if exact:
                    e.wait_vm(('pd', u, j))
                elif j == 0:
                    e('s_waitcnt vmcnt(0)')
                for r in range(4):
                    p = pd[u & 1][j][r]
                    if j == 0:
                        e('v_lshlrev_b32 %s, 16, %s' % (x[2 * r], p))
                        e('v_and_b32 %s, 0xffff0000, %s' % (x[2 * r + 1], p))
                    else:
                        e('v_lshlrev_b32 %s, 16, %s' % (vt[0], p))
                        e('v_and_b32 %s, 0xffff0000, %s' % (p, p))
                        e('v_add_f32 %s, %s, %s' % (x[2 * r], x[2 * r], vt[0]))
                        e('v_add_f32 %s, %s, %s' % (x[2 * r + 1], x[2 * r + 1], p))
            for i in range(4):
                e('v_permlane16_swap_b32 %s, %s' % (x[i], x[4 + i]))
            for r in range(4):
                e('v_lshlrev_b32 %s, 16, %s' % (vt[0], bb[u][r]))
                e('v_and_b32 %s, 0xffff0000, %s' % (bb[u][r], bb[u][r]))
                e('v_fma_f32 %s, %s, %s, %s' % (x[2 * r], x[2 * r], vRs, vt[0]))
                e('v_fma_f32 %s, %s, %s, %s' % (x[2 * r + 1], x[2 * r + 1], vRs, bb[u][r]))
                e('v_lshlrev_b32 %s, 16, %s' % (vt[0], hh[u][r]))
                e('v_and_b32 %s, 0xffff0000, %s' % (hh[u][r], hh[u][r]))
                e('v_add_f32 %s, %s, %s' % (x[2 * r], x[2 * r], vt[0]))
                e('v_add_f32 %s, %s, %s' % (x[2 * r + 1], x[2 * r + 1], hh[u][r]))
                e('v_cvt_pk_bf16_f32 %s, %s, %s' % (hh[u][r], x[2 * r], x[2 * r + 1]))
            e('buffer_store_dwordx4 %s, %s, %s, %s offen offset:%d' % (hh[u], vOut, rO, sB, 512 * u))
        loads(0); loads(1)
        e.wait_lg('rs')
        unit(0, True)
        self.wave0(lambda: loads(2))
        unit(1, True)
        self.wave0(lambda: unit(2, False))

    def finish(self):
        e = self.e
        if self.cfg.stamps:
            st, vt = self.st, self.vt
            e('s_waitcnt vmcnt(0)')
            self.stamp('end')
            e('v_writelane_b32 %s, %s, 15' % (self.vStamp, self.sT0[0]))
            e('s_lshl_b32 %s, s2, 2\ns_add_u32 %s, %s, %s\ns_lshl_b32 %s, %s, 6' % (st[0], st[0], st[0], self.sW, st[0], st[0]))
            e('s_add_u32 %s, %s, %d' % (st[0], st[0], WS_STAMP))
            e('v_lshlrev_b32 %s, 2, %s' % (vt[0], self.vL))
            e('s_mov_b64 exec, 0xffff')
            e('buffer_store_dword %s, %s, %s, %s offen' % (self.vStamp, vt[0], self.rWS, st[0]))
        e.label('L_end')
        e('s_endpgm')

    def build(self):
        self.setup()
        self.p1()
        if self.cfg.stop != 'p1':
            self.p2()
            if self.cfg.stop != 'p2':
                self.p3()
                self.p4()
        self.finish()
        body = self.e.text()
        head = '; @launch grid=(256,1,1) block=(256,1,1) lds=%d\n' % LDS_BYTES
        t = head + '.amdgcn_target "amdgcn-amd-amdhsa--gfx950"\n.text\n.globl %s\n.p2align 8\n.type %s,@function\n%s:\n' % (KN, KN, KN)
        t += body
        t += '''.section .rodata,"a"
.p2align 6
.amdhsa_kernel %s
  .amdhsa_next_free_vgpr 512
  .amdhsa_next_free_sgpr 102
  .amdhsa_accum_offset 256
  .amdhsa_group_segment_fixed_size 0
  .amdhsa_kernarg_size 88
  .amdhsa_user_sgpr_count 2
  .amdhsa_user_sgpr_kernarg_segment_ptr 1
  .amdhsa_system_sgpr_workgroup_id_x 1
  .amdhsa_float_denorm_mode_32 3
.end_amdhsa_kernel
''' % KN
        return t

if __name__ == '__main__':
    g = Gen(Cfg(stamps='-s' in sys.argv))
    t = g.build()
    open(sys.argv[1], 'w').write(t)
    print('lines', t.count('\n'), 'vpeak', g.v.peak, 'apeak', g.a.peak, 'speak', g.s.peak, 'nops', g.e.nops, file=sys.stderr)
```
